```python
import torch

def _softmax(x, axis=-1):
    return torch.softmax(x, dim=axis)
def _gelu(x):
    return torch.nn.functional.gelu(x, approximate="tanh")
def _silu(x):
    return torch.nn.functional.silu(x)
def _sigmoid(x):
    return torch.sigmoid(x)
def _layernorm(x, axis=-1, eps=1e-5):
    m = x.mean(dim=axis, keepdim=True)
    v = x.var(dim=axis, keepdim=True, unbiased=False)
    return (x - m) / torch.sqrt(v + eps)
def _scatter_add(tgt, idx, src, axis=0):
    return tgt.clone().index_add_(axis, idx, src)
def _segment_sum(src, seg, n):
    out = torch.zeros((n,) + src.shape[1:], dtype=src.dtype)
    return out.index_add_(0, seg, src)
def _pad(x, pw):
    flat = tuple(v for pair in reversed(pw) for v in pair)
    return torch.nn.functional.pad(x, flat)

kernel_name = 'standalone__mha_softmax__near_ridge'

def setup_inputs():

    _w = (lambda a: (lambda t: t.to(torch.bfloat16) if t.is_floating_point() else t)(torch.as_tensor(a)))
    B, H, Sq, Sk, D = 8, 32, 512, 512, 128
    return {
        "q": _w((lambda *s: torch.randn(*s, dtype=torch.bfloat16) * 0.8)(B, H, Sq, D)),
        "k": _w((lambda *s: torch.randn(*s, dtype=torch.bfloat16) * 0.8)(B, H, Sk, D)),
        "v": _w((lambda *s: torch.randn(*s, dtype=torch.bfloat16) * 0.05)(B, H, Sk, D)),
    }

def reference(q, k, v):
    scale = q.shape[-1] ** -0.5
    scores = torch.einsum("bhqd,bhkd->bhqk", q, k) * scale
    p = _softmax(scores, axis=-1)
    return torch.einsum("bhqk,bhkd->bhqd", p, v)
```

```python
import argparse
import struct
import sys
import os

sys.path.insert(0, os.path.dirname(os.path.abspath(__file__)))
from asmlib import I, R, rs, mfma, valu, salu, nop, check_hazards, check_counters, model_cycles, inst_sizes

NAME = "standalone__mha_softmax__near_ridge"
TENSOR_BYTES = 8 * 32 * 512 * 128 * 2
LOG2E = 1.4426950408889634
CSCALE = LOG2E / (128 ** 0.5)


def f32bits(x):
    return struct.unpack("<I", struct.pack("<f", x))[0]


V_DMA, V_QO = 0, 1
V_KA = 2
V_VA = 4
V_L = 8
V_NEGM = 12
V_S = 28
V_P = 44
V_Q = 60
V_O = 124
V_T = 252
A_K, A_V, A_QR = 0, 64, 128

S_Q, S_K, S_V, S_O = 4, 8, 12, 16
S_WAVE, S_M0W = 20, 21
S_KV = 22
S_QO = 24
S_SOA, S_SOB = 26, 27
S_C = 28
S_THR, S_MASK = 30, 31
S_FLAG = 32
S_T = 48
S_TS = 56

K_RING, V_RING = 0, 65536
NSLOT = 4


def vO(qt, dt):
    return V_O + (qt * 8 + dt) * 4


def vQ(qt, ds):
    return V_Q + (qt * 4 + ds) * 4


def aK(kt, ds):
    return A_K + (kt * 4 + ds) * 4


def aV(dt, ks):
    return A_V + (dt * 2 + ks) * 4


class Op:
    def __init__(self, ins, after_mfma=None, after_ops=(), deadline=None, margin=0, target=0.0):
        self.ins = ins
        self.after_mfma = after_mfma
        self.after_ops = list(after_ops)
        self.deadline = deadline
        self.margin = margin
        self.target = target
        self.pos = None


class Gen:
    def __init__(self, cfg):
        self.cfg = cfg
        self.prog = []
        self.states = 0
        self.lg_out = []
        self.pads = []
        self.nstamp = 0

    def e(self, ins):
        if isinstance(ins, (list, tuple)):
            for x in ins:
                self.e(x)
            return
        self.prog.append(ins)
        ins.pos_end = self.states + ins.states()
        self.states = ins.pos_end
        if ins.kind == "ds":
            self.lg_out.append(ins)

    def lg_need(self, regs):
        regs = set(regs)
        idx = -1
        for i, o in enumerate(self.lg_out):
            if regs & set(o.wr):
                idx = i
        if idx < 0:
            return None
        return len(self.lg_out) - 1 - idx

    def wait_lg(self, regs):
        n = self.lg_need(regs)
        if n is None:
            return None
        n = min(n, 15)
        self.lg_out = self.lg_out[len(self.lg_out) - n:] if n else []
        return I(f"s_waitcnt lgkmcnt({n})", "wait")

    def wait_vm(self, tags):
        n = 0
        for ins in reversed(self.prog):
            if ins.kind == "vmem":
                if ins.tag in tags:
                    assert n <= 63
                    return I(f"s_waitcnt vmcnt({n})", "wait")
                n += 1
        raise AssertionError(f"no vmem with tag {tags}")

    def stamp(self):
        if not self.cfg.stamps:
            return []
        k = self.nstamp
        self.nstamp += 1
        assert S_TS + 2 * k + 1 < 100
        return [I(f"s_memrealtime {rs('s', S_TS + 2 * k, 2)}", "salu")]

    def dma_tile(self, j, which):
        cfg = self.cfg
        srd = S_K if which == "K" else S_V
        ring = K_RING if which == "K" else V_RING
        slot = ring + (j % NSLOT) * 16384
        out = []
        for n, (sreg, imm, ldsoff) in enumerate(((S_SOA, 0, 0), (S_SOB, 0, 4096), (S_SOA, 128, 8192), (S_SOB, 128, 12288))):
            m0 = salu(f"s_add_u32 m0, s{S_M0W}, {slot + ldsoff - imm}", rd=[("s", S_M0W)], wr=["m0"])
            off = f" offset:{imm}" if imm else ""
            ld = I(f"buffer_load_dwordx4 v{V_DMA}, {rs('s', srd, 4)}, s{sreg} offen{off}{cfg.kv_aux} lds", "vmem",
                   rd=[("v", V_DMA), ("s", sreg), "m0"], tag=f"{which}{j}")
            out.append((m0, ld))
        return out

    def dma_soff(self, j):
        base = S_KV + (j >> 3)
        off = (j & 7) * 16384
        return [salu(f"s_add_u32 s{S_SOA}, s{base}, {off}", rd=[("s", base)], wr=[("s", S_SOA)]),
                salu(f"s_add_u32 s{S_SOB}, s{base}, {off + 8192}", rd=[("s", base)], wr=[("s", S_SOB)])]

    def q_loads(self, p, qt, kind, base, sreg):
        out = []
        for ds in range(4):
            off = f" offset:{ds * 64}" if ds else ""
            out.append(I(f"buffer_load_dwordx4 {rs(kind, base + 4 * ds, 4)}, v{V_QO}, {rs('s', S_Q, 4)}, s{sreg} offen{off}{self.cfg.q_aux}",
                         "vmem", rd=[("v", V_QO), ("s", sreg)], wr=R(kind, base + 4 * ds, 4), tag=f"Q{p}{qt}"))
        return out

    def qo_soff(self, p, qt, sreg):
        return salu(f"s_add_u32 s{sreg}, s{S_QO + p}, {qt * 4096}", rd=[("s", S_QO + p)], wr=[("s", sreg)])

    def k_read(self, j, kt, ds):
        imm = K_RING + (j % NSLOT) * 16384 + (ds >> 1) * 8192 + kt * 2048
        a = aK(kt, ds)
        return I(f"ds_read_b128 {rs('a', a, 4)}, v{V_KA + (ds & 1)} offset:{imm}", "ds",
                 rd=[("v", V_KA + (ds & 1))], wr=R("a", a, 4))

    def v_read(self, j, dt, ks, rd):
        imm = (j % NSLOT) * 16384 + (dt >> 2) * 8192 + ks * 4096 + rd * 2048
        a = aV(dt, ks) + 2 * rd
        return I(f"ds_read_b64_tr_b16 {rs('a', a, 2)}, v{V_VA + (dt & 3)} offset:{imm}", "ds",
                 rd=[("v", V_VA + (dt & 3))], wr=R("a", a, 2))

    def prescale(self, dst, src_kind, src, tmp):
        st = [[] for _ in range(16)]
        for i in range(16):
            t = tmp + (i % 4) * 2
            raw = src + i
            seq = []
            if src_kind == "a":
                raw = tmp + 8 + (i % 4)
                seq.append(valu(f"v_accvgpr_read_b32 v{raw}, a{src + i}", [("a", src + i)], [("v", raw)]))
            seq.append(valu(f"v_lshlrev_b32 v{t}, 16, v{raw}", [("v", raw)], [("v", t)]))
            seq.append(valu(f"v_and_b32 v{t + 1}, s{S_MASK}, v{raw}", [("v", raw)], [("v", t + 1)]))
            seq.append(valu(f"v_pk_mul_f32 {rs('v', t, 2)}, {rs('v', t, 2)}, {rs('s', S_C, 2)}", R("v", t, 2), R("v", t, 2)))
            seq.append(valu(f"v_cvt_pk_bf16_f32 v{dst + i}, v{t}, v{t + 1}", R("v", t, 2), [("v", dst + i)]))
            st[i] = seq
        out = []
        n = len(st[0])
        for g in range(0, 16, 4):
            for s in range(n):
                for i in range(g, g + 4):
                    out.append(st[i][s])
        return out

    def xlane(self, op, a, b):
        return [
            valu(f"v_mov_b32 v{b}, v{a}", [("v", a)], [("v", b)]),
            nop(1),
            valu(f"v_permlane32_swap_b32 v{b}, v{a}", [("v", a), ("v", b)], [("v", a), ("v", b)], "perm"),
            valu(f"{op} v{a}, v{b}, v{a}", [("v", a), ("v", b)], [("v", a)]),
            valu(f"v_mov_b32 v{b}, v{a}", [("v", a)], [("v", b)]),
            nop(1),
            valu(f"v_permlane16_swap_b32 v{b}, v{a}", [("v", a), ("v", b)], [("v", a), ("v", b)], "perm"),
            valu(f"{op} v{a}, v{b}, v{a}", [("v", a), ("v", b)], [("v", a)]),
        ]

    def epilogue(self, obase, lreg, tmp, sreg, flag, tag):
        out = self.xlane("v_add_f32", lreg, tmp + 1)
        out.append(valu(f"v_rcp_f32 v{tmp}, v{lreg}", [("v", lreg)], [("v", tmp)], "trans"))
        if flag is not None:
            out.append(valu(f"v_cmp_nlt_f32 {rs('s', flag, 2)}, v{lreg}, s{S_THR}", [("v", lreg)], R("s", flag, 2)))
        else:
            out.append(nop(0))
        for u in range(4):
            o = obase + 8 * u
            for k in range(4):
                out.append(valu(f"v_pk_mul_f32 {rs('v', o + 2 * k, 2)}, {rs('v', o + 2 * k, 2)}, {rs('v', tmp, 2)} op_sel_hi:[1,0]",
                                R("v", o + 2 * k, 2) + [("v", tmp)], R("v", o + 2 * k, 2)))
        pend = []
        for u in range(4):
            o = obase + 8 * u
            for k in range(4):
                out.append(valu(f"v_cvt_pk_bf16_f32 v{o + k}, v{o + 2 * k}, v{o + 2 * k + 1}", R("v", o + 2 * k, 2), [("v", o + k)]))
                if pend:
                    out.append(pend.pop(0))
            off = f" offset:{u * 64}" if u else ""
            pend = [
                valu(f"v_permlane16_swap_b32 v{o}, v{o + 2}", [("v", o), ("v", o + 2)], [("v", o), ("v", o + 2)], "perm"),
                valu(f"v_permlane16_swap_b32 v{o + 1}, v{o + 3}", [("v", o + 1), ("v", o + 3)], [("v", o + 1), ("v", o + 3)], "perm"),
                I(f"buffer_store_dwordx4 {rs('v', o, 4)}, v{V_QO}, {rs('s', S_O, 4)}, s{sreg} offen{off}{self.cfg.o_aux}", "vmem",
                  rd=R("v", o, 4) + [("v", V_QO), ("s", sreg)], store_data=R("v", o, 4), tag=tag),
            ]
            if u < 3:
                pend.insert(0, None)
                pend = [p for p in pend]
                first = pend.pop(0)
                assert first is None
                pend.insert(0, nop(0))
        out.append(nop(1))
        out += pend
        return out

    def maxops(self, t, negm):
        m, x = t, t + 1
        seq = [
            (valu(f"v_max3_f32 v{m}, v{t}, v{t + 1}, v{t + 2}", R("v", t, 3), [("v", m)]), 0),
            (valu(f"v_max_f32 v{m}, v{m}, v{t + 3}", [("v", m), ("v", t + 3)], [("v", m)]), 0),
            (valu(f"v_mov_b32 v{x}, v{m}", [("v", m)], [("v", x)]), 0),
            (valu(f"v_permlane32_swap_b32 v{x}, v{m}", [("v", m), ("v", x)], [("v", m), ("v", x)], "perm"), 2),
            (valu(f"v_max_f32 v{m}, v{x}, v{m}", [("v", m), ("v", x)], [("v", m)]), 0),
            (valu(f"v_mov_b32 v{x}, v{m}", [("v", m)], [("v", x)]), 0),
            (valu(f"v_permlane16_swap_b32 v{x}, v{m}", [("v", m), ("v", x)], [("v", m), ("v", x)], "perm"), 2),
        ]
        for i in range(4):
            seq.append((valu(f"v_min_f32 v{negm + i}, -v{x}, -v{m}", [("v", m), ("v", x)], [("v", negm + i)]), 0))
        return seq

    def prologue(self):
        e = self.e
        raw = lambda t, rd=(), wr=(): e(salu(t, rd, wr))
        e(self.stamp())
        raw("s_cmp_ge_u32 s2, 256")
        e(I("s_cbranch_scc1 L_end", "branch"))
        raw("s_load_dwordx4 s[4:7], s[0:1], 0")
        raw("s_load_dwordx4 s[12:15], s[0:1], 16")
        vv = lambda t, rd, wr: e(valu(t, [("v", r) for r in rd], [("v", w) for w in wr]))
        T = V_S
        vv(f"v_lshrrev_b32 v{T}, 6, v0", [0], [T])
        vv(f"v_and_b32 v{T + 1}, 63, v0", [0], [T + 1])
        e(valu(f"v_readfirstlane_b32 s{S_WAVE}, v{T}", [("v", T)], [("s", S_WAVE)]))
        lane = T + 1
        raw("s_and_b32 s48, s2, 7")
        raw("s_lshr_b32 s49, s2, 4")
        raw("s_lshl_b32 s49, s49, 3")
        raw("s_or_b32 s48, s48, s49")
        raw(f"s_lshl_b32 s{S_KV}, s48, 17")
        raw(f"s_add_u32 s{S_KV + 1}, s{S_KV}, {128 * 131072}")
        raw("s_bfe_u32 s49, s2, 0x10003")
        raw("s_lshl_b32 s49, s49, 16")
        raw(f"s_lshl_b32 s50, s{S_WAVE}, 14")
        raw("s_add_u32 s49, s49, s50")
        raw(f"s_add_u32 s{S_QO}, s{S_KV}, s49")
        raw(f"s_add_u32 s{S_QO + 1}, s{S_KV + 1}, s49")
        raw(f"s_lshl_b32 s{S_M0W}, s{S_WAVE}, 10")
        q16, g, pi, t0, t1, f = T + 2, T + 3, T + 4, T + 5, T + 6, T + 7
        vv(f"v_and_b32 v{q16}, 15, v{lane}", [lane], [q16])
        vv(f"v_lshrrev_b32 v{g}, 4, v{lane}", [lane], [g])
        vv(f"v_and_b32 v{t0}, 1, v{g}", [g], [t0])
        vv(f"v_lshrrev_b32 v{t1}, 1, v{g}", [g], [t1])
        vv(f"v_lshl_or_b32 v{pi}, v{t0}, 1, v{t1}", [t0, t1], [pi])
        vv(f"v_lshlrev_b32 v{t0}, 8, v{q16}", [q16], [t0])
        vv(f"v_lshl_or_b32 v{V_QO}, v{pi}, 4, v{t0}", [pi, t0], [V_QO])
        vv(f"v_lshrrev_b32 v{t0}, 3, v{lane}", [lane], [t0])
        vv(f"v_and_b32 v{f}, 6, v{t0}", [t0], [f])
        vv(f"v_and_b32 v{t1}, 1, v{T}", [T], [t1])
        vv(f"v_or_b32 v{f}, v{f}, v{t1}", [f, t1], [f])
        vv(f"v_and_b32 v{t1}, 7, v{lane}", [lane], [t1])
        vv(f"v_xor_b32 v{f}, v{f}, v{t1}", [f, t1], [f])
        vv(f"v_lshl_add_u32 v{t0}, v{T}, 3, v{t0}", [T, t0], [t0])
        vv(f"v_lshlrev_b32 v{t0}, 8, v{t0}", [t0], [t0])
        vv(f"v_lshl_or_b32 v{V_DMA}, v{f}, 4, v{t0}", [f, t0], [V_DMA])
        e(I("s_waitcnt lgkmcnt(0)", "wait"))
        raw("s_mov_b32 s8, s6")
        raw("s_mov_b32 s9, s7")
        raw("s_mov_b32 s16, s14")
        raw("s_mov_b32 s17, s15")
        for b in (S_Q, S_K, S_V, S_O):
            raw(f"s_mov_b32 s{b + 2}, {TENSOR_BYTES}")
            raw(f"s_mov_b32 s{b + 3}, 0x00020000")

        def qld(qt):
            e(self.qo_soff(0, qt, S_T))
            e(self.q_loads(0, qt, "v", vO(qt, 0), S_T))

        def tile(j, which):
            for m0, ld in self.dma_tile(j, which):
                e(m0)
                e(nop(0))
                e(ld)
        qld(0)
        e(self.dma_soff(0))
        tile(0, "K")
        qld(1)
        tile(0, "V")
        qld(2)
        qld(3)
        for j in range(1, NSLOT):
            e(self.dma_soff(j))
            tile(j, "K")
            tile(j, "V")
        vv(f"v_and_b32 v{f}, 6, v{q16}", [q16], [f])
        vv(f"v_lshrrev_b32 v{t0}, 3, v{q16}", [q16], [t0])
        vv(f"v_or_b32 v{f}, v{f}, v{t0}", [f, t0], [f])
        vv(f"v_xor_b32 v{f}, v{f}, v{pi}", [f, pi], [f])
        vv(f"v_lshlrev_b32 v{t0}, 7, v{q16}", [q16], [t0])
        vv(f"v_lshl_or_b32 v{V_KA}, v{f}, 4, v{t0}", [f, t0], [V_KA])
        vv(f"v_xor_b32 v{V_KA + 1}, 64, v{V_KA}", [V_KA], [V_KA + 1])
        k16 = q16
        vv(f"v_lshrrev_b32 v{k16}, 2, v{lane}", [lane], [k16])
        vv(f"v_and_b32 v{f}, 6, v{k16}", [k16], [f])
        vv(f"v_lshrrev_b32 v{t0}, 3, v{k16}", [k16], [t0])
        vv(f"v_or_b32 v{f}, v{f}, v{t0}", [f, t0], [f])
        vv(f"v_bfe_u32 v{t0}, v{lane}, 1, 1", [lane], [t0])
        vv(f"v_xor_b32 v{f}, v{f}, v{t0}", [f, t0], [f])
        vv(f"v_lshlrev_b32 v{t0}, 7, v{k16}", [k16], [t0])
        vv(f"v_lshl_or_b32 v{t0}, v{f}, 4, v{t0}", [f, t0], [t0])
        vv(f"v_and_b32 v{t1}, 1, v{lane}", [lane], [t1])
        vv(f"v_lshl_or_b32 v{t0}, v{t1}, 3, v{t0}", [t1, t0], [t0])
        vv(f"v_add_u32 v{V_VA}, {V_RING}, v{t0}", [t0], [V_VA])
        for b in range(1, 4):
            vv(f"v_xor_b32 v{V_VA + b}, {32 * b}, v{V_VA}", [V_VA], [V_VA + b])
        raw(f"s_mov_b32 s{S_C}, {f32bits(CSCALE):#x}")
        raw(f"s_mov_b32 s{S_C + 1}, {f32bits(CSCALE):#x}")
        raw(f"s_mov_b32 s{S_THR}, {f32bits(2.0 ** self.cfg.thr_log2):#x}")
        raw(f"s_mov_b32 s{S_MASK}, 0xffff0000")
        e(I("@TOUCH@", "raw"))
        e(self.stamp())

    def main(self):
        cfg = self.cfg
        e = self.e
        items = [(j, qt) for j in range(16) for qt in range(4)]
        NP = len(items)
        first = lambda P: items[P][0] % 8 == 0
        mf = []
        qk_start, pv_start, pre_start, per_start = {}, {}, {}, {}
        for P in range(NP + 1):
            per_start[P] = len(mf)
            if P < NP:
                j, qt = items[P]
                qk_start[P] = len(mf)
                for kt in range(4):
                    for ds in range(4):
                        c = ("v", V_NEGM + 4 * qt) if ds == 0 else ("v", V_S + 4 * kt)
                        mf.append(mfma(("v", V_S + 4 * kt), ("a", aK(kt, ds)), ("v", vQ(qt, ds)), c))
            if P + 1 < NP and first(P + 1):
                pre_start[P + 1] = len(mf)
                qn = items[P + 1][1]
                for ds in range(4):
                    mf.append(mfma(("v", vO(qn, 0)), ("a", aK(0, ds)), ("v", vQ(qn, ds)), 0 if ds == 0 else ("v", vO(qn, 0))))
            if P >= 1:
                j, qt = items[P - 1]
                pv_start[P - 1] = len(mf)
                for dt in range(8):
                    for ks in range(2):
                        c = 0 if (first(P - 1) and ks == 0) else ("v", vO(qt, dt))
                        mf.append(mfma(("v", vO(qt, dt)), ("a", aV(dt, ks)), ("v", V_P + 8 * ((P - 1) & 1) + 4 * ks), c))
        NG = len(mf)
        per_start[NP + 1] = NG
        pre = [[] for _ in range(NG + 1)]
        scal = [[] for _ in range(NG)]
        mem = [[] for _ in range(NG)]

        for j in range(1, 16):
            P = 4 * j - 1
            for n in range(16):
                g = qk_start[P] + n if (n < 4 and j == 8) else per_start[P] + 2 * n
                mem[g].append(lambda j=j, n=n: self.k_read(j, n >> 2, n & 3))
            g0 = pv_start[4 * j - 1]
            for n in range(32):
                mem[g0 + n].append(lambda j=j, n=n: self.v_read(j, n >> 2, (n >> 1) & 1, n & 1))
        for j in range(0, 15):
            g0 = per_start[4 * j + 2]
            scal[g0].append(lambda j=j: self.wait_vm({f"V{j + 1}"}))
            scal[g0].append(lambda: I("s_barrier", "barrier"))
            jn = j + NSLOT
            if jn < 16:
                so = self.dma_soff(jn)
                scal[g0 + 1].append(lambda x=so[0]: x)
                scal[g0 + 2].append(lambda x=so[1]: x)
                pcs = self.dma_tile(jn, "K") + self.dma_tile(jn, "V")
                for n, (m0, ld) in enumerate(pcs):
                    scal[g0 + 3 + 4 * n - (1 if n == 7 else 0)].append(lambda x=m0: x)
                    mem[g0 + 4 + 4 * n - (1 if n == 7 else 0)].append(lambda x=ld: x)
        for qt in range(4):
            g0 = per_start[4 * (cfg.qpref_tile + qt) + 2]
            scal[g0 + 5].append(lambda qt=qt: self.qo_soff(1, qt, S_T + 1))
            for n, ld in enumerate(self.q_loads(1, qt, "a", A_QR + 16 * qt, S_T + 1)):
                mem[g0 + 6 + 4 * n].append(lambda x=ld: x)
        pre[0].append(lambda: [self.wait_vm({"Q00"})] + self.prescale(vQ(0, 0), "v", vO(0, 0), vO(0, 4)))

        def start_k():
            e(self.wait_vm({"K0"}))
            e(I("s_barrier", "barrier"))
            for n in range(16):
                e(self.k_read(0, n >> 2, n & 3))
            e(self.stamp())
            for ds in range(4):
                w = self.wait_lg(R("a", aK(0, ds), 4))
                if w:
                    e(w)
                e(mfma(("v", vO(0, 0)), ("a", aK(0, ds)), ("v", vQ(0, ds)), 0 if ds == 0 else ("v", vO(0, 0))))
            e(nop(7))
            for ins, gap in self.maxops(vO(0, 0), V_NEGM):
                if gap:
                    e(nop(gap - 1))
                e(ins)
            e(nop(0))
            e(I("s_waitcnt lgkmcnt(0)", "wait"))
            self.lg_out = []
            return []
        pre[0].append(start_k)
        for qt in range(1, 4):
            pre[pre_start[qt]].append(lambda qt=qt: [self.wait_vm({f"Q0{qt}"})] + self.prescale(vQ(qt, 0), "v", vO(qt, 0), vO(qt, 4)) + [nop(1)])
        pre[per_start[1]].append(lambda: [self.wait_vm({"V0"}), I("s_barrier", "barrier")] + self.stamp())
        for n in range(32):
            mem[per_start[1] + n // 2].append(lambda n=n: self.v_read(0, n >> 2, (n >> 1) & 1, n & 1))
        for P in range(NP):
            j, qt = items[P]
            if j % 8 != 7:
                continue
            p = j >> 3
            g = per_start[P + 2]

            def blk(p=p, qt=qt):
                out = [self.qo_soff(p, qt, S_T + 2)]
                out += self.epilogue(vO(qt, 0), V_L + qt, vQ(qt, 0), S_T + 2, S_FLAG + 2 * (4 * p + qt), f"O{p}{qt}")
                if p == 0:
                    e(out)
                    out = [self.wait_vm({f"Q1{qt}"})] + self.prescale(vQ(qt, 0), "a", A_QR + 16 * qt, vO(qt, 4) + 4)
                return out
            pre[g].append(blk)
        if cfg.stamps:
            for P in (4, 16, 28, 32, 36, 48, 60):
                pre[per_start[P]].insert(0, lambda: self.stamp())

        memcost = [4 * len(mem[g]) + 4 * max(0, len(scal[g]) - 1) for g in range(NG)]
        eq, sq, xq = [], [], []
        for P in range(NP):
            j, qt = items[P]
            ops = []
            nxt = qk_start.get(P + 1)
            for kt in range(4):
                s = V_S + 4 * kt
                dl_s = nxt + 4 * kt if nxt is not None else None
                es = []
                for r in range(4):
                    E = Op(valu(f"v_exp_f32 v{s + r}, v{s + r}", [("v", s + r)], [("v", s + r)], "trans"),
                           after_mfma=qk_start[P] + 4 * kt + 3, deadline=dl_s)
                    es.append(E)
                    ops.append(E)
                    l = V_L + qt
                    if first(P) and kt == 0 and r == 0:
                        pass
                    elif first(P) and kt == 0 and r == 1:
                        ops.append(Op(valu(f"v_add_f32 v{l}, v{s}, v{s + 1}", R("v", s, 2), [("v", l)]),
                                      after_ops=[(es[0], 1), (es[1], 1)], deadline=dl_s))
                    else:
                        ops.append(Op(valu(f"v_add_f32 v{l}, v{s + r}, v{l}", [("v", s + r), ("v", l)], [("v", l)]),
                                      after_ops=[(E, 1)], deadline=dl_s))
                    if r & 1:
                        pr = V_P + 8 * (P & 1) + 4 * (kt >> 1) + 2 * (kt & 1) + (r >> 1)
                        dl = pv_start[P] + (kt >> 1)
                        if dl_s is not None and dl_s < dl:
                            dl, mg = dl_s, 0
                        else:
                            mg = 2
                        ops.append(Op(valu(f"v_cvt_pk_bf16_f32 v{pr}, v{s + r - 1}, v{s + r}", R("v", s + r - 1, 2), [("v", pr)]),
                                      after_ops=[(es[r - 1], 1), (E, 1)], deadline=dl, margin=mg))
            w0 = qk_start[P] + cfg.delta
            w1 = (nxt if nxt is not None else per_start[P + 1] - 6) + cfg.delta
            if nxt is None:
                w1 = pv_start[P]
            tot = sum(o.ins.cost for o in ops)
            extra = 44 if (P + 1) in pre_start else 0
            cap = (tot + extra + sum(memcost[w0:w1])) / (w1 - w0)
            cum, g, acc = 0, w0, 0.0
            for o in ops:
                cum += o.ins.cost
                while g < w1 - 1:
                    share = cap - memcost[g]
                    if extra and g >= pre_start[P + 1] + 6 and g < pre_start[P + 1] + 17:
                        share -= 4
                    if acc + share >= cum - 1e-6:
                        break
                    acc += share
                    g += 1
                o.target = g
                (eq if o.ins.kind == "trans" else sq).append(o)
        for Pn, g0 in sorted(pre_start.items()):
            prev = None
            for ins, gap in self.maxops(vO(items[Pn][1], 0), V_NEGM + 4 * items[Pn][1]):
                o = Op(ins, after_mfma=g0 + 3, after_ops=[(prev, gap)] if prev else [], deadline=qk_start[Pn], margin=2, target=g0)
                xq.append(o)
                prev = o

        self.pattern = []

        def ready(o, g):
            if o.after_mfma is not None:
                if o.after_mfma > g or self.states - mf[o.after_mfma].pos_end < 8:
                    return False
            for p, n in o.after_ops:
                if p.pos is None or self.states - p.pos < n:
                    return False
            return True

        def put(q, o):
            q.remove(o)
            e(o.ins)
            o.pos = o.ins.pos_end
            return o.ins.cost

        def drain(upto_g, final=False):
            while True:
                due = [(q, q[0]) for q in (xq, eq, sq) if q and (final or (q[0].deadline is not None and q[0].deadline <= upto_g))]
                if not due:
                    return
                rdy = [(q, o) for q, o in due if ready(o, upto_g)]
                if rdy:
                    put(*rdy[0])
                    continue
                alt = [(q, q[0]) for q in (eq, sq, xq) if q and ready(q[0], upto_g)]
                if alt:
                    put(*alt[0])
                else:
                    e(nop(0))

        for g in range(NG):
            for blk in pre[g]:
                e(blk())
            w = self.wait_lg(mf[g].rd)
            if w:
                e(w)
                self.late_waits = getattr(self, "late_waits", 0) + 1
            e(mf[g])
            self.pads.append(len(self.prog))
            fill = 0
            ns = 0
            pat = ""
            if g + 1 < NG and not pre[g + 1]:
                w = self.wait_lg(mf[g + 1].rd)
                if w:
                    e(w)
                    ns += 1
                    pat += "w"
            for s in scal[g]:
                e(s())
                ns += 1
                pat += "s"
            fill += 4 * max(0, ns - 1)
            for m in mem[g]:
                e(m())
                fill += 4
                pat += "M"
            while True:
                hx = xq[0] if xq and ready(xq[0], g) else None
                he = eq[0] if eq and ready(eq[0], g) else None
                hs = sq[0] if sq and ready(sq[0], g) else None
                hs2 = len(sq) > 1 and hs is not None and all(p.pos is not None for p, n in sq[1].after_ops)
                small = hx or hs
                smallq = xq if hx else sq
                due = [o for o in (xq[:1] + eq[:1] + sq[:1]) if o.deadline is not None and o.deadline <= g + 1 + (1 if o.margin else 0)]
                behind = any(o.target < g for o in (eq[:1] + sq[:1])) or bool(due)
                pick = None
                if fill == 0:
                    if he and (not small or not (hs2 or (hx and hs)) or he.target <= sq[0].target + cfg.elead) and he.target <= g + cfg.early:
                        pick = (eq, he)
                    elif small and (hx or hs.target <= g + cfg.early):
                        pick = (smallq, small)
                elif fill < 8:
                    if small and (hx or hs.target <= g + cfg.early):
                        pick = (smallq, small)
                    elif he and behind:
                        pick = (eq, he)
                elif behind and (fill < 12 or due):
                    if small and (hx or hs.target <= g or due):
                        pick = (smallq, small)
                    elif he and (he.target <= g or due):
                        pick = (eq, he)
                if pick is None:
                    break
                pat += "E" if pick[0] is eq else ("x" if pick[0] is xq else ("c" if "cvt" in pick[1].ins.text else "a"))
                fill += put(*pick)
            drain(g + 1)
            need = 0
            if g + 1 < NG:
                for ins in reversed(self.prog[-2:]):
                    if ins.is_valu() and set(ins.wr) & set(mf[g + 1].rd):
                        need = max(need, 2 - (self.states - ins.pos_end))
                if need > 0 and not pre[g + 1]:
                    e(nop(need - 1))
                    pat += "n"
            self.pattern.append(pat)
        drain(NG, final=True)
        for blk in pre[NG]:
            e(blk())
        self.per_start = per_start
        e(self.stamp())

    def fallback(self):
        L = []
        a = L.append
        q, o, s, p, kf, vf, m, x, l, nm, vv = 60, 124, 28, 44, 76, 92, 8, 9, 10, 12, 2
        a("    s_waitcnt vmcnt(0)")
        a("    s_mov_b32 s52, 0")
        for i in range(8):
            a(f"    s_cmp_lg_u64 {rs('s', S_FLAG + 2 * i, 2)}, 0")
            a(f"    s_cselect_b32 s53, {1 << i}, 0")
            a("    s_or_b32 s52, s52, s53")
        a("    s_cmp_eq_u32 s52, 0")
        a("    s_cbranch_scc1 L_end")
        a("    v_mbcnt_lo_u32_b32 v3, -1, 0")
        a("    v_mbcnt_hi_u32_b32 v3, -1, v3")
        a("    v_lshrrev_b32 v4, 4, v3")
        a("    v_and_b32 v3, 15, v3")
        a("    v_lshlrev_b32 v3, 1, v3")
        a(f"    v_lshl_or_b32 v{vv}, v4, 10, v3")
        a("L_fb_next:")
        a("    s_ff1_i32_b32 s53, s52")
        a("    s_bitset0_b32 s52, s53")
        a("    s_cmp_ge_u32 s53, 4")
        a(f"    s_cselect_b32 s54, s{S_QO + 1}, s{S_QO}")
        a(f"    s_cselect_b32 s55, s{S_KV + 1}, s{S_KV}")
        a("    s_and_b32 s53, s53, 3")
        a("    s_lshl_b32 s53, s53, 12")
        a("    s_add_u32 s54, s54, s53")
        for ds in range(4):
            a(f"    buffer_load_dwordx4 {rs('v', o + 4 * ds, 4)}, v{V_QO}, {rs('s', S_Q, 4)}, s54 offen offset:{ds * 64}")
        a("    s_waitcnt vmcnt(0)")
        L += ["    " + i.text for i in self.prescale(q, "v", o, o + 16)]
        a(f"    v_mov_b32 v{m}, 0xff800000")
        a("    s_mov_b32 s48, s55")
        a("    s_mov_b32 s49, 0")
        a("L_fb_max:")
        for ds in range(4):
            a(f"    buffer_load_dwordx4 {rs('v', kf + 4 * ds, 4)}, v{V_QO}, {rs('s', S_K, 4)}, s48 offen offset:{ds * 64}")
        a("    s_waitcnt vmcnt(0)")
        for ds in range(4):
            a("    " + mfma(("v", s), ("v", kf + 4 * ds), ("v", q + 4 * ds), 0 if ds == 0 else ("v", s)).text)
        a("    s_nop 7")
        a(f"    v_max3_f32 v{m}, v{m}, v{s}, v{s + 1}")
        a(f"    v_max3_f32 v{m}, v{m}, v{s + 2}, v{s + 3}")
        a("    s_add_u32 s48, s48, 4096")
        a("    s_add_u32 s49, s49, 1")
        a("    s_cmp_lt_u32 s49, 32")
        a("    s_cbranch_scc1 L_fb_max")
        L += ["    " + i.text for i in self.xlane("v_max_f32", m, x)]
        for i in range(4):
            a(f"    v_sub_f32 v{nm + i}, 0, v{m}")
        a(f"    v_mov_b32 v{l}, 0")
        for i in range(32):
            a(f"    v_mov_b32 v{o + i}, 0")
        a("    s_mov_b32 s48, s55")
        a("    s_mov_b32 s49, 0")
        a("L_fb_pv:")
        for h in range(2):
            a(f"    s_add_u32 s50, s48, {h * 4096}")
            for ds in range(4):
                a(f"    buffer_load_dwordx4 {rs('v', kf + 4 * ds, 4)}, v{V_QO}, {rs('s', S_K, 4)}, s50 offen offset:{ds * 64}")
            a("    s_waitcnt vmcnt(0)")
            for ds in range(4):
                a("    " + mfma(("v", s), ("v", kf + 4 * ds), ("v", q + 4 * ds), ("v", nm) if ds == 0 else ("v", s)).text)
            a("    s_nop 7")
            for r in range(4):
                a(f"    v_exp_f32 v{s + r}, v{s + r}")
            a("    s_nop 0")
            for r in range(4):
                a(f"    v_add_f32 v{l}, v{s + r}, v{l}")
            a(f"    v_cvt_pk_bf16_f32 v{p + 2 * h}, v{s}, v{s + 1}")
            a(f"    v_cvt_pk_bf16_f32 v{p + 2 * h + 1}, v{s + 2}, v{s + 3}")
        a("    s_add_u32 s50, s48, 4096")
        for dt in range(8):
            for h in range(2):
                for ee in range(4):
                    op = "buffer_load_short_d16_hi" if ee & 1 else "buffer_load_short_d16"
                    a(f"    {op} v{vf + 2 * h + (ee >> 1)}, v{vv}, {rs('s', S_V, 4)}, s{50 if h else 48} offen offset:{ee * 256 + dt * 32}")
            a("    s_waitcnt vmcnt(0)")
            a("    " + mfma(("v", o + 4 * dt), ("v", vf), ("v", p), ("v", o + 4 * dt)).text)
            a("    s_nop 7")
        a("    s_add_u32 s48, s48, 8192")
        a("    s_add_u32 s49, s49, 1")
        a("    s_cmp_lt_u32 s49, 16")
        a("    s_cbranch_scc1 L_fb_pv")
        L += ["    " + i.text for i in self.epilogue(o, l, q, 54, None, "fb")]
        a("    s_waitcnt vmcnt(0)")
        a("    s_cmp_lg_u32 s52, 0")
        a("    s_cbranch_scc1 L_fb_next")
        return L

    def stamp_store(self):
        if not self.cfg.stamps:
            return []
        L = ["    s_waitcnt vmcnt(0)", f"    s_memrealtime {rs('s', S_TS + 2 * self.nstamp, 2)}",
             "    s_load_dwordx2 s[48:49], s[0:1], 40", "    s_waitcnt lgkmcnt(0)",
             "    s_mov_b32 s50, 0x1000000", "    s_mov_b32 s51, 0x00020000",
             f"    s_lshl_b32 s52, s2, 2", f"    s_add_u32 s52, s52, s{S_WAVE}", "    s_lshl_b32 s52, s52, 7",
             "    v_mov_b32 v2, s52"]
        for k in range(self.nstamp + 1):
            L += [f"    v_mov_b32 v3, s{S_TS + 2 * k}", f"    buffer_store_dword v3, v2, s[48:51], 0 offen offset:{4 * k}", "    s_nop 1"]
        return L

    def build(self):
        cfg = self.cfg
        self.prologue()
        nprol = len(self.prog)
        self.main()
        errs = check_hazards(self.prog) + check_counters(self.prog)
        for x in errs[:20]:
            print("ERR", x, file=sys.stderr)
        assert not errs
        body = self.prog[nprol:]
        tail = self.stamp_store() + self.fallback()
        sizes = inst_sizes([i.text for i in body])
        assert len(sizes) == len(body)
        cand = set(k - nprol for k in self.pads)
        lines, addr, npad, nextpage = [], 0, 0, 0
        for k, (ins, sz) in enumerate(zip(body, sizes)):
            if addr >= nextpage and (k in cand or k == 0):
                lines.append(f"L_pad{npad}:\n    s_cbranch_vccnz @NEXT{npad}@")
                npad += 1
                addr += 4
                nextpage = (addr // 4096 + 1) * 4096
            lines.append("    " + ins.text)
            addr += sz
        if addr >= nextpage - 256:
            lines.append(f"L_pad{npad}:\n    s_cbranch_vccnz @NEXT{npad}@")
            npad += 1
        text = "\n".join(lines)
        for k in range(npad):
            text = text.replace(f"@NEXT{k}@", f"L_pad{k + 4}" if k + 4 < npad else "L_touched")
        touch = ["    s_mov_b64 vcc, -1"]
        for w in range(3):
            touch += [f"    s_cmp_eq_u32 s{S_WAVE}, {w}", f"    s_cbranch_scc1 L_pad{w}"]
        touch += ["    s_branch L_pad3", "L_touched:", "    s_mov_b64 vcc, 0"]
        if not cfg.touch:
            touch = ["L_touched:", "    s_mov_b64 vcc, 0"]
        pro = []
        for ins in self.prog[:nprol]:
            pro += touch if ins.text == "@TOUCH@" else ["    " + ins.text]
        hdr = f"""; Fused multi-head attention, B*H = 256 heads, S = 512, D = 128, bf16 in/out.
; One persistent workgroup per CU: 4 waves x 64 query rows, two passes (two heads); the workgroups w and w^8
; sends that query tile to the exact true-maximum path at the end of the kernel.
; @launch grid=(256,1,1) block=(256,1,1) lds={2 * NSLOT * 16384}
.amdgcn_target "amdgcn-amd-amdhsa--gfx950"
.text
.globl {NAME}_kernel
.p2align 8
.type {NAME}_kernel,@function
{NAME}_kernel:
"""
        kd = f"""
L_end:
    s_endpgm
.section .rodata,"a"
.p2align 6
.amdhsa_kernel {NAME}_kernel
  .amdhsa_next_free_vgpr 512
  .amdhsa_next_free_sgpr 102
  .amdhsa_accum_offset 256
  .amdhsa_group_segment_fixed_size 0
  .amdhsa_kernarg_size 48
  .amdhsa_user_sgpr_count 2
  .amdhsa_user_sgpr_kernarg_segment_ptr 1
  .amdhsa_system_sgpr_workgroup_id_x 1
.end_amdhsa_kernel
"""
        self.body_bytes = addr
        return hdr + "\n".join(pro) + "\n    s_branch L_pad0\n    .p2align 12\n" + text + "\n" + "\n".join(tail) + kd


def parse(argv):
    ap = argparse.ArgumentParser()
    ap.add_argument("-o", default=f"cdna_kernels/{NAME}.s")
    ap.add_argument("--kv_nt", type=int, default=0)
    ap.add_argument("--q_nt", type=int, default=0)
    ap.add_argument("--o_nt", type=int, default=0)
    ap.add_argument("--stamps", type=int, default=0)
    ap.add_argument("--touch", type=int, default=1)
    ap.add_argument("--delta", type=int, default=7)
    ap.add_argument("--early", type=int, default=2)
    ap.add_argument("--elead", type=int, default=1)
    ap.add_argument("--thr_log2", type=int, default=24)
    ap.add_argument("--qpref_tile", type=int, default=2)
    ap.add_argument("--show", type=int, default=0)
    cfg = ap.parse_args(argv)
    cfg.kv_aux = " nt" if cfg.kv_nt else ""
    cfg.q_aux = " nt" if cfg.q_nt else ""
    cfg.o_aux = " nt" if cfg.o_nt else ""
    return cfg


if __name__ == "__main__":
    cfg = parse(sys.argv[1:])
    g = Gen(cfg)
    txt = g.build()
    open(cfg.o, "w").write(txt)
    print(f"wrote {cfg.o}: {len(g.prog)} instrs, body {g.body_bytes} bytes, model cycles {model_cycles(g.prog)}, late waits {getattr(g, 'late_waits', 0)}")
    if cfg.show:
        for P in range(65):
            print(P, " ".join(x or "-" for x in g.pattern[g.per_start[P]:g.per_start[P + 1]]))
```

```python
import argparse
import struct
import sys
import os

sys.path.insert(0, os.path.dirname(os.path.abspath(__file__)))
from asmlib import I, R, rs, mfma, valu, salu, nop, check_hazards, check_counters, model_cycles, inst_sizes

NAME = "standalone__mha_softmax__near_ridge"
TENSOR_BYTES = 8 * 32 * 512 * 128 * 2
LOG2E = 1.4426950408889634
CSCALE = LOG2E / (128 ** 0.5)


def f32bits(x):
    return struct.unpack("<I", struct.pack("<f", x))[0]


V_DMA, V_QO = 0, 1
V_KA = 2
V_VA = 4
V_L = 8
V_NEGM = 12
V_S = 28
V_P = 44
V_Q = 60
V_O = 124
V_T = 252
A_K, A_V, A_QR = 0, 64, 128

S_Q, S_K, S_V, S_O = 4, 8, 12, 16
S_WAVE, S_M0W = 20, 21
S_KV = 22
S_QO = 24
S_SOA, S_SOB = 26, 27
S_C = 28
S_THR, S_MASK = 30, 31
S_FLAG = 32
S_T = 48
S_TS = 56

K_RING, V_RING = 0, 65536
NSLOT = 4


def vO(qt, dt):
    return V_O + (qt * 8 + dt) * 4


def vQ(qt, ds):
    return V_Q + (qt * 4 + ds) * 4


def aK(kt, ds):
    return A_K + (kt * 4 + ds) * 4


def aV(dt, ks):
    return A_V + (dt * 2 + ks) * 4


class Op:
    def __init__(self, ins, after_mfma=None, after_ops=(), deadline=None, margin=0, target=0.0):
        self.ins = ins
        self.after_mfma = after_mfma
        self.after_ops = list(after_ops)
        self.deadline = deadline
        self.margin = margin
        self.target = target
        self.pos = None


class Gen:
    def __init__(self, cfg):
        self.cfg = cfg
        self.prog = []
        self.states = 0
        self.lg_out = []
        self.pads = []
        self.nstamp = 0

    def e(self, ins):
        if isinstance(ins, (list, tuple)):
            for x in ins:
                self.e(x)
            return
        self.prog.append(ins)
        ins.pos_end = self.states + ins.states()
        self.states = ins.pos_end
        if ins.kind == "ds":
            self.lg_out.append(ins)

    def lg_need(self, regs):
        regs = set(regs)
        idx = -1
        for i, o in enumerate(self.lg_out):
            if regs & set(o.wr):
                idx = i
        if idx < 0:
            return None
        return len(self.lg_out) - 1 - idx

    def wait_lg(self, regs):
        n = self.lg_need(regs)
        if n is None:
            return None
        n = min(n, 15)
        self.lg_out = self.lg_out[len(self.lg_out) - n:] if n else []
        return I(f"s_waitcnt lgkmcnt({n})", "wait")

    def wait_vm(self, tags):
        n = 0
        for ins in reversed(self.prog):
            if ins.kind == "vmem":
                if ins.tag in tags:
                    assert n <= 63
                    return I(f"s_waitcnt vmcnt({n})", "wait")
                n += 1
        raise AssertionError(f"no vmem with tag {tags}")

    def stamp(self):
        if not self.cfg.stamps:
            return []
        k = self.nstamp
        self.nstamp += 1
        assert S_TS + 2 * k + 1 < 100
        return [I(f"s_memrealtime {rs('s', S_TS + 2 * k, 2)}", "salu")]

    def dma_tile(self, j, which):
        cfg = self.cfg
        srd = S_K if which == "K" else S_V
        ring = K_RING if which == "K" else V_RING
        slot = ring + (j % NSLOT) * 16384
        out = []
        for n, (sreg, imm, ldsoff) in enumerate(((S_SOA, 0, 0), (S_SOB, 0, 4096), (S_SOA, 128, 8192), (S_SOB, 128, 12288))):
            m0 = salu(f"s_add_u32 m0, s{S_M0W}, {slot + ldsoff - imm}", rd=[("s", S_M0W)], wr=["m0"])
            off = f" offset:{imm}" if imm else ""
            ld = I(f"buffer_load_dwordx4 v{V_DMA}, {rs('s', srd, 4)}, s{sreg} offen{off}{cfg.kv_aux} lds", "vmem",
                   rd=[("v", V_DMA), ("s", sreg), "m0"], tag=f"{which}{j}")
            out.append((m0, ld))
        return out

    def dma_soff(self, j):
        base = S_KV + (j >> 3)
        off = (j & 7) * 16384
        return [salu(f"s_add_u32 s{S_SOA}, s{base}, {off}", rd=[("s", base)], wr=[("s", S_SOA)]),
                salu(f"s_add_u32 s{S_SOB}, s{base}, {off + 8192}", rd=[("s", base)], wr=[("s", S_SOB)])]

    def q_loads(self, p, qt, kind, base, sreg):
        out = []
        for ds in range(4):
            off = f" offset:{ds * 64}" if ds else ""
            out.append(I(f"buffer_load_dwordx4 {rs(kind, base + 4 * ds, 4)}, v{V_QO}, {rs('s', S_Q, 4)}, s{sreg} offen{off}{self.cfg.q_aux}",
                         "vmem", rd=[("v", V_QO), ("s", sreg)], wr=R(kind, base + 4 * ds, 4), tag=f"Q{p}{qt}"))
        return out

    def qo_soff(self, p, qt, sreg):
        return salu(f"s_add_u32 s{sreg}, s{S_QO + p}, {qt * 4096}", rd=[("s", S_QO + p)], wr=[("s", sreg)])

    def k_read(self, j, kt, ds):
        imm = K_RING + (j % NSLOT) * 16384 + (ds >> 1) * 8192 + kt * 2048
        a = aK(kt, ds)
        return I(f"ds_read_b128 {rs('a', a, 4)}, v{V_KA + (ds & 1)} offset:{imm}", "ds",
                 rd=[("v", V_KA + (ds & 1))], wr=R("a", a, 4))

    def v_read(self, j, dt, ks, rd):
        imm = (j % NSLOT) * 16384 + (dt >> 2) * 8192 + ks * 4096 + rd * 2048
        a = aV(dt, ks) + 2 * rd
        return I(f"ds_read_b64_tr_b16 {rs('a', a, 2)}, v{V_VA + (dt & 3)} offset:{imm}", "ds",
                 rd=[("v", V_VA + (dt & 3))], wr=R("a", a, 2))

    def prescale(self, dst, src_kind, src, tmp):
        st = [[] for _ in range(16)]
        for i in range(16):
            t = tmp + (i % 4) * 2
            raw = src + i
            seq = []
            if src_kind == "a":
                raw = tmp + 8 + (i % 4)
                seq.append(valu(f"v_accvgpr_read_b32 v{raw}, a{src + i}", [("a", src + i)], [("v", raw)]))
            seq.append(valu(f"v_lshlrev_b32 v{t}, 16, v{raw}", [("v", raw)], [("v", t)]))
            seq.append(valu(f"v_and_b32 v{t + 1}, s{S_MASK}, v{raw}", [("v", raw)], [("v", t + 1)]))
            seq.append(valu(f"v_pk_mul_f32 {rs('v', t, 2)}, {rs('v', t, 2)}, {rs('s', S_C, 2)}", R("v", t, 2), R("v", t, 2)))
            seq.append(valu(f"v_cvt_pk_bf16_f32 v{dst + i}, v{t}, v{t + 1}", R("v", t, 2), [("v", dst + i)]))
            st[i] = seq
        out = []
        n = len(st[0])
        for g in range(0, 16, 4):
            for s in range(n):
                for i in range(g, g + 4):
                    out.append(st[i][s])
        return out

    def xlane(self, op, a, b):
        return [
            valu(f"v_mov_b32 v{b}, v{a}", [("v", a)], [("v", b)]),
            nop(1),
            valu(f"v_permlane32_swap_b32 v{b}, v{a}", [("v", a), ("v", b)], [("v", a), ("v", b)], "perm"),
            valu(f"{op} v{a}, v{b}, v{a}", [("v", a), ("v", b)], [("v", a)]),
            valu(f"v_mov_b32 v{b}, v{a}", [("v", a)], [("v", b)]),
            nop(1),
            valu(f"v_permlane16_swap_b32 v{b}, v{a}", [("v", a), ("v", b)], [("v", a), ("v", b)], "perm"),
            valu(f"{op} v{a}, v{b}, v{a}", [("v", a), ("v", b)], [("v", a)]),
        ]

    def epilogue(self, obase, lreg, tmp, sreg, flag, tag):
        out = self.xlane("v_add_f32", lreg, tmp + 1)
        out.append(valu(f"v_rcp_f32 v{tmp}, v{lreg}", [("v", lreg)], [("v", tmp)], "trans"))
        if flag is not None:
            out.append(valu(f"v_cmp_nlt_f32 {rs('s', flag, 2)}, v{lreg}, s{S_THR}", [("v", lreg)], R("s", flag, 2)))
        else:
            out.append(nop(0))
        for u in range(4):
            o = obase + 8 * u
            for k in range(4):
                out.append(valu(f"v_pk_mul_f32 {rs('v', o + 2 * k, 2)}, {rs('v', o + 2 * k, 2)}, {rs('v', tmp, 2)} op_sel_hi:[1,0]",
                                R("v", o + 2 * k, 2) + [("v", tmp)], R("v", o + 2 * k, 2)))
        pend = []
        for u in range(4):
            o = obase + 8 * u
            for k in range(4):
                out.append(valu(f"v_cvt_pk_bf16_f32 v{o + k}, v{o + 2 * k}, v{o + 2 * k + 1}", R("v", o + 2 * k, 2), [("v", o + k)]))
                if pend:
                    out.append(pend.pop(0))
            off = f" offset:{u * 64}" if u else ""
            pend = [
                valu(f"v_permlane16_swap_b32 v{o}, v{o + 2}", [("v", o), ("v", o + 2)], [("v", o), ("v", o + 2)], "perm"),
                valu(f"v_permlane16_swap_b32 v{o + 1}, v{o + 3}", [("v", o + 1), ("v", o + 3)], [("v", o + 1), ("v", o + 3)], "perm"),
                I(f"buffer_store_dwordx4 {rs('v', o, 4)}, v{V_QO}, {rs('s', S_O, 4)}, s{sreg} offen{off}{self.cfg.o_aux}", "vmem",
                  rd=R("v", o, 4) + [("v", V_QO), ("s", sreg)], store_data=R("v", o, 4), tag=tag),
            ]
            if u < 3:
                pend.insert(0, None)
                pend = [p for p in pend]
                first = pend.pop(0)
                assert first is None
                pend.insert(0, nop(0))
        out.append(nop(1))
        out += pend
        return out

    def maxops(self, t, negm):
        m, x = t, t + 1
        seq = [
            (valu(f"v_max3_f32 v{m}, v{t}, v{t + 1}, v{t + 2}", R("v", t, 3), [("v", m)]), 0),
            (valu(f"v_max_f32 v{m}, v{m}, v{t + 3}", [("v", m), ("v", t + 3)], [("v", m)]), 0),
            (valu(f"v_mov_b32 v{x}, v{m}", [("v", m)], [("v", x)]), 0),
            (valu(f"v_permlane32_swap_b32 v{x}, v{m}", [("v", m), ("v", x)], [("v", m), ("v", x)], "perm"), 2),
            (valu(f"v_max_f32 v{m}, v{x}, v{m}", [("v", m), ("v", x)], [("v", m)]), 0),
            (valu(f"v_mov_b32 v{x}, v{m}", [("v", m)], [("v", x)]), 0),
            (valu(f"v_permlane16_swap_b32 v{x}, v{m}", [("v", m), ("v", x)], [("v", m), ("v", x)], "perm"), 2),
        ]
        for i in range(4):
            seq.append((valu(f"v_min_f32 v{negm + i}, -v{x}, -v{m}", [("v", m), ("v", x)], [("v", negm + i)]), 0))
        return seq

    def prologue(self):
        e = self.e
        raw = lambda t, rd=(), wr=(): e(salu(t, rd, wr))
        e(self.stamp())
        raw("s_cmp_ge_u32 s2, 256")
        e(I("s_cbranch_scc1 L_end", "branch"))
        raw("s_load_dwordx4 s[4:7], s[0:1], 0")
        raw("s_load_dwordx4 s[12:15], s[0:1], 16")
        vv = lambda t, rd, wr: e(valu(t, [("v", r) for r in rd], [("v", w) for w in wr]))
        T = V_S
        vv(f"v_lshrrev_b32 v{T}, 6, v0", [0], [T])
        vv(f"v_and_b32 v{T + 1}, 63, v0", [0], [T + 1])
        e(valu(f"v_readfirstlane_b32 s{S_WAVE}, v{T}", [("v", T)], [("s", S_WAVE)]))
        lane = T + 1
        raw("s_and_b32 s48, s2, 7")
        raw("s_lshr_b32 s49, s2, 4")
        raw("s_lshl_b32 s49, s49, 3")
        raw("s_or_b32 s48, s48, s49")
        raw(f"s_lshl_b32 s{S_KV}, s48, 17")
        raw(f"s_add_u32 s{S_KV + 1}, s{S_KV}, {128 * 131072}")
        raw("s_bfe_u32 s49, s2, 0x10003")
        raw("s_lshl_b32 s49, s49, 16")
        raw(f"s_lshl_b32 s50, s{S_WAVE}, 14")
        raw("s_add_u32 s49, s49, s50")
        raw(f"s_add_u32 s{S_QO}, s{S_KV}, s49")
        raw(f"s_add_u32 s{S_QO + 1}, s{S_KV + 1}, s49")
        raw(f"s_lshl_b32 s{S_M0W}, s{S_WAVE}, 10")
        q16, g, pi, t0, t1, f = T + 2, T + 3, T + 4, T + 5, T + 6, T + 7
        vv(f"v_and_b32 v{q16}, 15, v{lane}", [lane], [q16])
        vv(f"v_lshrrev_b32 v{g}, 4, v{lane}", [lane], [g])
        vv(f"v_and_b32 v{t0}, 1, v{g}", [g], [t0])
        vv(f"v_lshrrev_b32 v{t1}, 1, v{g}", [g], [t1])
        vv(f"v_lshl_or_b32 v{pi}, v{t0}, 1, v{t1}", [t0, t1], [pi])
        vv(f"v_lshlrev_b32 v{t0}, 8, v{q16}", [q16], [t0])
        vv(f"v_lshl_or_b32 v{V_QO}, v{pi}, 4, v{t0}", [pi, t0], [V_QO])
        vv(f"v_lshrrev_b32 v{t0}, 3, v{lane}", [lane], [t0])
        vv(f"v_and_b32 v{f}, 6, v{t0}", [t0], [f])
        vv(f"v_and_b32 v{t1}, 1, v{T}", [T], [t1])
        vv(f"v_or_b32 v{f}, v{f}, v{t1}", [f, t1], [f])
        vv(f"v_and_b32 v{t1}, 7, v{lane}", [lane], [t1])
        vv(f"v_xor_b32 v{f}, v{f}, v{t1}", [f, t1], [f])
        vv(f"v_lshl_add_u32 v{t0}, v{T}, 3, v{t0}", [T, t0], [t0])
        vv(f"v_lshlrev_b32 v{t0}, 8, v{t0}", [t0], [t0])
        vv(f"v_lshl_or_b32 v{V_DMA}, v{f}, 4, v{t0}", [f, t0], [V_DMA])
        e(I("s_waitcnt lgkmcnt(0)", "wait"))
        raw("s_mov_b32 s8, s6")
        raw("s_mov_b32 s9, s7")
        raw("s_mov_b32 s16, s14")
        raw("s_mov_b32 s17, s15")
        for b in (S_Q, S_K, S_V, S_O):
            raw(f"s_mov_b32 s{b + 2}, {TENSOR_BYTES}")
            raw(f"s_mov_b32 s{b + 3}, 0x00020000")

        def qld(qt):
            e(self.qo_soff(0, qt, S_T))
            e(self.q_loads(0, qt, "v", vO(qt, 0), S_T))

        def tile(j, which):
            for m0, ld in self.dma_tile(j, which):
                e(m0)
                e(nop(0))
                e(ld)
        qld(0)
        e(self.dma_soff(0))
        tile(0, "K")
        qld(1)
        tile(0, "V")
        qld(2)
        qld(3)
        for j in range(1, NSLOT):
            e(self.dma_soff(j))
            tile(j, "K")
            tile(j, "V")
        vv(f"v_and_b32 v{f}, 6, v{q16}", [q16], [f])
        vv(f"v_lshrrev_b32 v{t0}, 3, v{q16}", [q16], [t0])
        vv(f"v_or_b32 v{f}, v{f}, v{t0}", [f, t0], [f])
        vv(f"v_xor_b32 v{f}, v{f}, v{pi}", [f, pi], [f])
        vv(f"v_lshlrev_b32 v{t0}, 7, v{q16}", [q16], [t0])
        vv(f"v_lshl_or_b32 v{V_KA}, v{f}, 4, v{t0}", [f, t0], [V_KA])
        vv(f"v_xor_b32 v{V_KA + 1}, 64, v{V_KA}", [V_KA], [V_KA + 1])
        k16 = q16
        vv(f"v_lshrrev_b32 v{k16}, 2, v{lane}", [lane], [k16])
        vv(f"v_and_b32 v{f}, 6, v{k16}", [k16], [f])
        vv(f"v_lshrrev_b32 v{t0}, 3, v{k16}", [k16], [t0])
        vv(f"v_or_b32 v{f}, v{f}, v{t0}", [f, t0], [f])
        vv(f"v_bfe_u32 v{t0}, v{lane}, 1, 1", [lane], [t0])
        vv(f"v_xor_b32 v{f}, v{f}, v{t0}", [f, t0], [f])
        vv(f"v_lshlrev_b32 v{t0}, 7, v{k16}", [k16], [t0])
        vv(f"v_lshl_or_b32 v{t0}, v{f}, 4, v{t0}", [f, t0], [t0])
        vv(f"v_and_b32 v{t1}, 1, v{lane}", [lane], [t1])
        vv(f"v_lshl_or_b32 v{t0}, v{t1}, 3, v{t0}", [t1, t0], [t0])
        vv(f"v_add_u32 v{V_VA}, {V_RING}, v{t0}", [t0], [V_VA])
        for b in range(1, 4):
            vv(f"v_xor_b32 v{V_VA + b}, {32 * b}, v{V_VA}", [V_VA], [V_VA + b])
        raw(f"s_mov_b32 s{S_C}, {f32bits(CSCALE):#x}")
        raw(f"s_mov_b32 s{S_C + 1}, {f32bits(CSCALE):#x}")
        raw(f"s_mov_b32 s{S_THR}, {f32bits(2.0 ** self.cfg.thr_log2):#x}")
        raw(f"s_mov_b32 s{S_MASK}, 0xffff0000")
        e(I("@TOUCH@", "raw"))
        e(self.stamp())

    def main(self):
        cfg = self.cfg
        e = self.e
        items = [(j, qt) for j in range(16) for qt in range(4)]
        NP = len(items)
        first = lambda P: items[P][0] % 8 == 0
        mf = []
        qk_start, pv_start, pre_start, per_start = {}, {}, {}, {}
        for P in range(NP + 1):
            per_start[P] = len(mf)
            if P < NP:
                j, qt = items[P]
                qk_start[P] = len(mf)
                for kt in range(4):
                    for ds in range(4):
                        c = ("v", V_NEGM + 4 * qt) if ds == 0 else ("v", V_S + 4 * kt)
                        mf.append(mfma(("v", V_S + 4 * kt), ("a", aK(kt, ds)), ("v", vQ(qt, ds)), c))
            if P + 1 < NP and first(P + 1):
                pre_start[P + 1] = len(mf)
                qn = items[P + 1][1]
                for ds in range(4):
                    mf.append(mfma(("v", vO(qn, 0)), ("a", aK(0, ds)), ("v", vQ(qn, ds)), 0 if ds == 0 else ("v", vO(qn, 0))))
            if P >= 1:
                j, qt = items[P - 1]
                pv_start[P - 1] = len(mf)
                for dt in range(8):
                    for ks in range(2):
                        c = 0 if (first(P - 1) and ks == 0) else ("v", vO(qt, dt))
                        mf.append(mfma(("v", vO(qt, dt)), ("a", aV(dt, ks)), ("v", V_P + 8 * ((P - 1) & 1) + 4 * ks), c))
        NG = len(mf)
        per_start[NP + 1] = NG
        pre = [[] for _ in range(NG + 1)]
        scal = [[] for _ in range(NG)]
        mem = [[] for _ in range(NG)]

        for j in range(1, 16):
            P = 4 * j - 1
            for n in range(16):
                g = qk_start[P] + n if (n < 4 and j == 8) else per_start[P] + 2 * n
                mem[g].append(lambda j=j, n=n: self.k_read(j, n >> 2, n & 3))
            g0 = pv_start[4 * j - 1]
            for n in range(32):
                mem[g0 + n].append(lambda j=j, n=n: self.v_read(j, n >> 2, (n >> 1) & 1, n & 1))
        for j in range(0, 15):
            g0 = per_start[4 * j + 2]
            scal[g0].append(lambda j=j: self.wait_vm({f"V{j + 1}"}))
            scal[g0].append(lambda: I("s_barrier", "barrier"))
            jn = j + NSLOT
            if jn < 16:
                so = self.dma_soff(jn)
                scal[g0 + 1].append(lambda x=so[0]: x)
                scal[g0 + 2].append(lambda x=so[1]: x)
                pcs = self.dma_tile(jn, "K") + self.dma_tile(jn, "V")
                for n, (m0, ld) in enumerate(pcs):
                    scal[g0 + 3 + 4 * n - (1 if n == 7 else 0)].append(lambda x=m0: x)
                    mem[g0 + 4 + 4 * n - (1 if n == 7 else 0)].append(lambda x=ld: x)
        for qt in range(4):
            g0 = per_start[4 * (cfg.qpref_tile + qt) + 2]
            scal[g0 + 5].append(lambda qt=qt: self.qo_soff(1, qt, S_T + 1))
            for n, ld in enumerate(self.q_loads(1, qt, "a", A_QR + 16 * qt, S_T + 1)):
                mem[g0 + 6 + 4 * n].append(lambda x=ld: x)
        pre[0].append(lambda: [self.wait_vm({"Q00"})] + self.prescale(vQ(0, 0), "v", vO(0, 0), vO(0, 4)))

        def start_k():
            e(self.wait_vm({"K0"}))
            e(I("s_barrier", "barrier"))
            for n in range(16):
                e(self.k_read(0, n >> 2, n & 3))
            e(self.stamp())
            for ds in range(4):
                w = self.wait_lg(R("a", aK(0, ds), 4))
                if w:
                    e(w)
                e(mfma(("v", vO(0, 0)), ("a", aK(0, ds)), ("v", vQ(0, ds)), 0 if ds == 0 else ("v", vO(0, 0))))
            e(nop(7))
            for ins, gap in self.maxops(vO(0, 0), V_NEGM):
                if gap:
                    e(nop(gap - 1))
                e(ins)
            e(nop(0))
            e(I("s_waitcnt lgkmcnt(0)", "wait"))
            self.lg_out = []
            return []
        pre[0].append(start_k)
        for qt in range(1, 4):
            pre[pre_start[qt]].append(lambda qt=qt: [self.wait_vm({f"Q0{qt}"})] + self.prescale(vQ(qt, 0), "v", vO(qt, 0), vO(qt, 4)) + [nop(1)])
        pre[per_start[1]].append(lambda: [self.wait_vm({"V0"}), I("s_barrier", "barrier")] + self.stamp())
        for n in range(32):
            mem[per_start[1] + n // 2].append(lambda n=n: self.v_read(0, n >> 2, (n >> 1) & 1, n & 1))
        for P in range(NP):
            j, qt = items[P]
            if j % 8 != 7:
                continue
            p = j >> 3
            g = per_start[P + 2]

            def blk(p=p, qt=qt):
                out = [self.qo_soff(p, qt, S_T + 2)]
                out += self.epilogue(vO(qt, 0), V_L + qt, vQ(qt, 0), S_T + 2, S_FLAG + 2 * (4 * p + qt), f"O{p}{qt}")
                if p == 0:
                    e(out)
                    out = [self.wait_vm({f"Q1{qt}"})] + self.prescale(vQ(qt, 0), "a", A_QR + 16 * qt, vO(qt, 4) + 4)
                return out
            pre[g].append(blk)
        if cfg.stamps:
            for P in (4, 16, 28, 32, 36, 48, 60):
                pre[per_start[P]].insert(0, lambda: self.stamp())

        memcost = [4 * len(mem[g]) + 4 * max(0, len(scal[g]) - 1) for g in range(NG)]
        eq, sq, xq = [], [], []
        for P in range(NP):
            j, qt = items[P]
            ops = []
            nxt = qk_start.get(P + 1)
            for kt in range(4):
                s = V_S + 4 * kt
                dl_s = nxt + 4 * kt if nxt is not None else None
                es = []
                for r in range(4):
                    E = Op(valu(f"v_exp_f32 v{s + r}, v{s + r}", [("v", s + r)], [("v", s + r)], "trans"),
                           after_mfma=qk_start[P] + 4 * kt + 3, deadline=dl_s)
                    es.append(E)
                    ops.append(E)
                    l = V_L + qt
                    if first(P) and kt == 0 and r == 0:
                        pass
                    elif first(P) and kt == 0 and r == 1:
                        ops.append(Op(valu(f"v_add_f32 v{l}, v{s}, v{s + 1}", R("v", s, 2), [("v", l)]),
                                      after_ops=[(es[0], 1), (es[1], 1)], deadline=dl_s))
                    else:
                        ops.append(Op(valu(f"v_add_f32 v{l}, v{s + r}, v{l}", [("v", s + r), ("v", l)], [("v", l)]),
                                      after_ops=[(E, 1)], deadline=dl_s))
                    if r & 1:
                        pr = V_P + 8 * (P & 1) + 4 * (kt >> 1) + 2 * (kt & 1) + (r >> 1)
                        dl = pv_start[P] + (kt >> 1)
                        if dl_s is not None and dl_s < dl:
                            dl, mg = dl_s, 0
                        else:
                            mg = 2
                        ops.append(Op(valu(f"v_cvt_pk_bf16_f32 v{pr}, v{s + r - 1}, v{s + r}", R("v", s + r - 1, 2), [("v", pr)]),
                                      after_ops=[(es[r - 1], 1), (E, 1)], deadline=dl, margin=mg))
            w0 = qk_start[P] + cfg.delta
            w1 = (nxt if nxt is not None else per_start[P + 1] - 6) + cfg.delta
            if nxt is None:
                w1 = pv_start[P]
            tot = sum(o.ins.cost for o in ops)
            extra = 44 if (P + 1) in pre_start else 0
            cap = (tot + extra + sum(memcost[w0:w1])) / (w1 - w0)
            cum, g, acc = 0, w0, 0.0
            for o in ops:
                cum += o.ins.cost
                while g < w1 - 1:
                    share = cap - memcost[g]
                    if extra and g >= pre_start[P + 1] + 6 and g < pre_start[P + 1] + 17:
                        share -= 4
                    if acc + share >= cum - 1e-6:
                        break
                    acc += share
                    g += 1
                o.target = g
                (eq if o.ins.kind == "trans" else sq).append(o)
        for Pn, g0 in sorted(pre_start.items()):
            prev = None
            for ins, gap in self.maxops(vO(items[Pn][1], 0), V_NEGM + 4 * items[Pn][1]):
                o = Op(ins, after_mfma=g0 + 3, after_ops=[(prev, gap)] if prev else [], deadline=qk_start[Pn], margin=2, target=g0)
                xq.append(o)
                prev = o

        self.pattern = []

        def ready(o, g):
            if o.after_mfma is not None:
                if o.after_mfma > g or self.states - mf[o.after_mfma].pos_end < 8:
                    return False
            for p, n in o.after_ops:
                if p.pos is None or self.states - p.pos < n:
                    return False
            return True

        def put(q, o):
            q.remove(o)
            e(o.ins)
            o.pos = o.ins.pos_end
            return o.ins.cost

        def drain(upto_g, final=False):
            while True:
                due = [(q, q[0]) for q in (xq, eq, sq) if q and (final or (q[0].deadline is not None and q[0].deadline <= upto_g))]
                if not due:
                    return
                rdy = [(q, o) for q, o in due if ready(o, upto_g)]
                if rdy:
                    put(*rdy[0])
                    continue
                alt = [(q, q[0]) for q in (eq, sq, xq) if q and ready(q[0], upto_g)]
                if alt:
                    put(*alt[0])
                else:
                    e(nop(0))

        for g in range(NG):
            for blk in pre[g]:
                e(blk())
            w = self.wait_lg(mf[g].rd)
            if w:
                e(w)
                self.late_waits = getattr(self, "late_waits", 0) + 1
            e(mf[g])
            self.pads.append(len(self.prog))
            fill = 0
            ns = 0
            pat = ""
            if g + 1 < NG and not pre[g + 1]:
                w = self.wait_lg(mf[g + 1].rd)
                if w:
                    e(w)
                    ns += 1
                    pat += "w"
            for s in scal[g]:
                e(s())
                ns += 1
                pat += "s"
            fill += 4 * max(0, ns - 1)
            for m in mem[g]:
                e(m())
                fill += 4
                pat += "M"
            while True:
                hx = xq[0] if xq and ready(xq[0], g) else None
                he = eq[0] if eq and ready(eq[0], g) else None
                hs = sq[0] if sq and ready(sq[0], g) else None
                hs2 = len(sq) > 1 and hs is not None and all(p.pos is not None for p, n in sq[1].after_ops)
                small = hx or hs
                smallq = xq if hx else sq
                due = [o for o in (xq[:1] + eq[:1] + sq[:1]) if o.deadline is not None and o.deadline <= g + 1 + (1 if o.margin else 0)]
                behind = any(o.target < g for o in (eq[:1] + sq[:1])) or bool(due)
                pick = None
                if fill == 0:
                    if he and (not small or not (hs2 or (hx and hs)) or he.target <= sq[0].target + cfg.elead) and he.target <= g + cfg.early:
                        pick = (eq, he)
                    elif small and (hx or hs.target <= g + cfg.early):
                        pick = (smallq, small)
                elif fill < 8:
                    if small and (hx or hs.target <= g + cfg.early):
                        pick = (smallq, small)
                    elif he and behind:
                        pick = (eq, he)
                elif behind and (fill < 12 or due):
                    if small and (hx or hs.target <= g or due):
                        pick = (smallq, small)
                    elif he and (he.target <= g or due):
                        pick = (eq, he)
                if pick is None:
                    break
                pat += "E" if pick[0] is eq else ("x" if pick[0] is xq else ("c" if "cvt" in pick[1].ins.text else "a"))
                fill += put(*pick)
            drain(g + 1)
            need = 0
            if g + 1 < NG:
                for ins in reversed(self.prog[-2:]):
                    if ins.is_valu() and set(ins.wr) & set(mf[g + 1].rd):
                        need = max(need, 2 - (self.states - ins.pos_end))
                if need > 0 and not pre[g + 1]:
                    e(nop(need - 1))
                    pat += "n"
            self.pattern.append(pat)
        drain(NG, final=True)
        for blk in pre[NG]:
            e(blk())
        self.per_start = per_start
        e(self.stamp())

    def fallback(self):
        L = []
        a = L.append
        q, o, s, p, kf, vf, m, x, l, nm, vv = 60, 124, 28, 44, 76, 92, 8, 9, 10, 12, 2
        a("    s_waitcnt vmcnt(0)")
        a("    s_mov_b32 s52, 0")
        for i in range(8):
            a(f"    s_cmp_lg_u64 {rs('s', S_FLAG + 2 * i, 2)}, 0")
            a(f"    s_cselect_b32 s53, {1 << i}, 0")
            a("    s_or_b32 s52, s52, s53")
        a("    s_cmp_eq_u32 s52, 0")
        a("    s_cbranch_scc1 L_end")
        a("    v_mbcnt_lo_u32_b32 v3, -1, 0")
        a("    v_mbcnt_hi_u32_b32 v3, -1, v3")
        a("    v_lshrrev_b32 v4, 4, v3")
        a("    v_and_b32 v3, 15, v3")
        a("    v_lshlrev_b32 v3, 1, v3")
        a(f"    v_lshl_or_b32 v{vv}, v4, 10, v3")
        a("L_fb_next:")
        a("    s_ff1_i32_b32 s53, s52")
        a("    s_bitset0_b32 s52, s53")
        a("    s_cmp_ge_u32 s53, 4")
        a(f"    s_cselect_b32 s54, s{S_QO + 1}, s{S_QO}")
        a(f"    s_cselect_b32 s55, s{S_KV + 1}, s{S_KV}")
        a("    s_and_b32 s53, s53, 3")
        a("    s_lshl_b32 s53, s53, 12")
        a("    s_add_u32 s54, s54, s53")
        for ds in range(4):
            a(f"    buffer_load_dwordx4 {rs('v', o + 4 * ds, 4)}, v{V_QO}, {rs('s', S_Q, 4)}, s54 offen offset:{ds * 64}")
        a("    s_waitcnt vmcnt(0)")
        L += ["    " + i.text for i in self.prescale(q, "v", o, o + 16)]
        a(f"    v_mov_b32 v{m}, 0xff800000")
        a("    s_mov_b32 s48, s55")
        a("    s_mov_b32 s49, 0")
        a("L_fb_max:")
        for ds in range(4):
            a(f"    buffer_load_dwordx4 {rs('v', kf + 4 * ds, 4)}, v{V_QO}, {rs('s', S_K, 4)}, s48 offen offset:{ds * 64}")
        a("    s_waitcnt vmcnt(0)")
        for ds in range(4):
            a("    " + mfma(("v", s), ("v", kf + 4 * ds), ("v", q + 4 * ds), 0 if ds == 0 else ("v", s)).text)
        a("    s_nop 7")
        a(f"    v_max3_f32 v{m}, v{m}, v{s}, v{s + 1}")
        a(f"    v_max3_f32 v{m}, v{m}, v{s + 2}, v{s + 3}")
        a("    s_add_u32 s48, s48, 4096")
        a("    s_add_u32 s49, s49, 1")
        a("    s_cmp_lt_u32 s49, 32")
        a("    s_cbranch_scc1 L_fb_max")
        L += ["    " + i.text for i in self.xlane("v_max_f32", m, x)]
        for i in range(4):
            a(f"    v_sub_f32 v{nm + i}, 0, v{m}")
        a(f"    v_mov_b32 v{l}, 0")
        for i in range(32):
            a(f"    v_mov_b32 v{o + i}, 0")
        a("    s_mov_b32 s48, s55")
        a("    s_mov_b32 s49, 0")
        a("L_fb_pv:")
        for h in range(2):
            a(f"    s_add_u32 s50, s48, {h * 4096}")
            for ds in range(4):
                a(f"    buffer_load_dwordx4 {rs('v', kf + 4 * ds, 4)}, v{V_QO}, {rs('s', S_K, 4)}, s50 offen offset:{ds * 64}")
            a("    s_waitcnt vmcnt(0)")
            for ds in range(4):
                a("    " + mfma(("v", s), ("v", kf + 4 * ds), ("v", q + 4 * ds), ("v", nm) if ds == 0 else ("v", s)).text)
            a("    s_nop 7")
            for r in range(4):
                a(f"    v_exp_f32 v{s + r}, v{s + r}")
            a("    s_nop 0")
            for r in range(4):
                a(f"    v_add_f32 v{l}, v{s + r}, v{l}")
            a(f"    v_cvt_pk_bf16_f32 v{p + 2 * h}, v{s}, v{s + 1}")
            a(f"    v_cvt_pk_bf16_f32 v{p + 2 * h + 1}, v{s + 2}, v{s + 3}")
        a("    s_add_u32 s50, s48, 4096")
        for dt in range(8):
            for h in range(2):
                for ee in range(4):
                    op = "buffer_load_short_d16_hi" if ee & 1 else "buffer_load_short_d16"
                    a(f"    {op} v{vf + 2 * h + (ee >> 1)}, v{vv}, {rs('s', S_V, 4)}, s{50 if h else 48} offen offset:{ee * 256 + dt * 32}")
            a("    s_waitcnt vmcnt(0)")
            a("    " + mfma(("v", o + 4 * dt), ("v", vf), ("v", p), ("v", o + 4 * dt)).text)
            a("    s_nop 7")
        a("    s_add_u32 s48, s48, 8192")
        a("    s_add_u32 s49, s49, 1")
        a("    s_cmp_lt_u32 s49, 16")
        a("    s_cbranch_scc1 L_fb_pv")
        L += ["    " + i.text for i in self.epilogue(o, l, q, 54, None, "fb")]
        a("    s_waitcnt vmcnt(0)")
        a("    s_cmp_lg_u32 s52, 0")
        a("    s_cbranch_scc1 L_fb_next")
        return L

    def stamp_store(self):
        if not self.cfg.stamps:
            return []
        if self.cfg.diag >= 0:
            k = min(self.cfg.diag, self.nstamp)
            return ["    s_waitcnt vmcnt(0)", f"    s_memrealtime {rs('s', S_TS + 2 * self.nstamp, 2)}", "    s_waitcnt lgkmcnt(0)",
                    f"    s_sub_u32 s52, s{S_TS + 2 * k}, s{S_TS}", f"    s_mul_i32 s52, s52, {self.cfg.diag_mult}", "    s_add_u32 s52, s52, 10000",
                    "L_spin:", "    s_memrealtime s[48:49]", "    s_waitcnt lgkmcnt(0)", f"    s_sub_u32 s48, s48, s{S_TS}",
                    "    s_cmp_lt_u32 s48, s52", "    s_cbranch_scc1 L_spin"]
        L = ["    s_waitcnt vmcnt(0)", f"    s_memrealtime {rs('s', S_TS + 2 * self.nstamp, 2)}",
             "    s_load_dwordx2 s[48:49], s[0:1], 40", "    s_waitcnt lgkmcnt(0)",
             "    s_mov_b32 s50, 0x1000000", "    s_mov_b32 s51, 0x00020000",
             f"    s_lshl_b32 s52, s2, 2", f"    s_add_u32 s52, s52, s{S_WAVE}", "    s_lshl_b32 s52, s52, 7",
             "    v_mov_b32 v2, s52"]
        for k in range(self.nstamp + 1):
            L += [f"    v_mov_b32 v3, s{S_TS + 2 * k}", f"    buffer_store_dword v3, v2, s[48:51], 0 offen offset:{4 * k}", "    s_nop 1"]
        return L

    def build(self):
        cfg = self.cfg
        self.prologue()
        nprol = len(self.prog)
        self.main()
        errs = check_hazards(self.prog) + check_counters(self.prog)
        for x in errs[:20]:
            print("ERR", x, file=sys.stderr)
        assert not errs
        body = self.prog[nprol:]
        tail = self.stamp_store() + self.fallback()
        sizes = inst_sizes([i.text for i in body])
        assert len(sizes) == len(body)
        cand = set(k - nprol for k in self.pads)
        lines, addr, npad, nextpage = [], 0, 0, 0
        for k, (ins, sz) in enumerate(zip(body, sizes)):
            if addr >= nextpage and (k in cand or k == 0):
                lines.append(f"L_pad{npad}:\n    s_cbranch_vccnz @NEXT{npad}@")
                npad += 1
                addr += 4
                nextpage = (addr // 4096 + 1) * 4096
            lines.append("    " + ins.text)
            addr += sz
        if addr >= nextpage - 256:
            lines.append(f"L_pad{npad}:\n    s_cbranch_vccnz @NEXT{npad}@")
            npad += 1
        text = "\n".join(lines)
        for k in range(npad):
            text = text.replace(f"@NEXT{k}@", f"L_pad{k + 4}" if k + 4 < npad else "L_touched")
        touch = ["    s_mov_b64 vcc, -1"]
        for w in range(3):
            touch += [f"    s_cmp_eq_u32 s{S_WAVE}, {w}", f"    s_cbranch_scc1 L_pad{w}"]
        touch += ["    s_branch L_pad3", "L_touched:", "    s_mov_b64 vcc, 0"]
        if not cfg.touch:
            touch = ["L_touched:", "    s_mov_b64 vcc, 0"]
        pro = []
        for ins in self.prog[:nprol]:
            pro += touch if ins.text == "@TOUCH@" else ["    " + ins.text]
        hdr = f"""; Fused multi-head attention, B*H = 256 heads, S = 512, D = 128, bf16 in/out.
; One persistent workgroup per CU: 4 waves x 64 query rows, two passes (two heads); the workgroups w and w^8
; sends that query tile to the exact true-maximum path at the end of the kernel.
; @launch grid=(256,1,1) block=(256,1,1) lds={2 * NSLOT * 16384}
.amdgcn_target "amdgcn-amd-amdhsa--gfx950"
.text
.globl {NAME}_kernel
.p2align 8
.type {NAME}_kernel,@function
{NAME}_kernel:
"""
        kd = f"""
L_end:
    s_endpgm
.section .rodata,"a"
.p2align 6
.amdhsa_kernel {NAME}_kernel
  .amdhsa_next_free_vgpr 512
  .amdhsa_next_free_sgpr 102
  .amdhsa_accum_offset 256
  .amdhsa_group_segment_fixed_size 0
  .amdhsa_kernarg_size 48
  .amdhsa_user_sgpr_count 2
  .amdhsa_user_sgpr_kernarg_segment_ptr 1
  .amdhsa_system_sgpr_workgroup_id_x 1
.end_amdhsa_kernel
"""
        self.body_bytes = addr
        return hdr + "\n".join(pro) + "\n    s_branch L_pad0\n    .p2align 12\n" + text + "\n" + "\n".join(tail) + kd


def parse(argv):
    ap = argparse.ArgumentParser()
    ap.add_argument("-o", default=f"cdna_kernels/{NAME}.s")
    ap.add_argument("--kv_nt", type=int, default=0)
    ap.add_argument("--q_nt", type=int, default=0)
    ap.add_argument("--o_nt", type=int, default=0)
    ap.add_argument("--stamps", type=int, default=0)
    ap.add_argument("--touch", type=int, default=1)
    ap.add_argument("--delta", type=int, default=7)
    ap.add_argument("--early", type=int, default=2)
    ap.add_argument("--elead", type=int, default=1)
    ap.add_argument("--thr_log2", type=int, default=24)
    ap.add_argument("--qpref_tile", type=int, default=2)
    ap.add_argument("--diag", type=int, default=-1)
    ap.add_argument("--diag_mult", type=int, default=1)
    ap.add_argument("--show", type=int, default=0)
    cfg = ap.parse_args(argv)
    cfg.kv_aux = " nt" if cfg.kv_nt else ""
    cfg.q_aux = " nt" if cfg.q_nt else ""
    cfg.o_aux = ["", " nt", " sc1", " sc0 sc1", " sc0 nt sc1"][cfg.o_nt]
    return cfg


if __name__ == "__main__":
    cfg = parse(sys.argv[1:])
    g = Gen(cfg)
    txt = g.build()
    open(cfg.o, "w").write(txt)
    print(f"wrote {cfg.o}: {len(g.prog)} instrs, body {g.body_bytes} bytes, model cycles {model_cycles(g.prog)}, late waits {getattr(g, 'late_waits', 0)}")
    if cfg.show:
        for P in range(65):
            print(P, " ".join(x or "-" for x in g.pattern[g.per_start[P]:g.per_start[P + 1]]))
```

```python
from gen_issue import kernel, init
import re
def ts_kernel(name, body, iters, pre=""):
    k = kernel(name, body + """
    s_memtime s[32:33]
    s_memrealtime s[34:35]
    s_waitcnt lgkmcnt(0)
    s_sub_u32 s32, s32, s24
    s_sub_u32 s34, s34, s28
    s_lshl_b32 s36, s22, 3
    s_add_u32 s36, s36, 8192
    s_cmp_eq_u32 s2, 0
    s_cselect_b32 s36, s36, 0x100000
    s_cmp_eq_u32 s20, 0
    s_cselect_b32 s36, s36, 0x100000
    v_mov_b32 v6, s36
    v_mov_b32 v16, s32
    v_mov_b32 v17, s34
    buffer_store_dwordx2 v[16:17], v6, s[12:15], 0 offen
""", iters, pre=pre)
    return k

def loadregs(lo, hi):
    s = []
    for r in range(lo, hi, 4):
        s.append(f"    buffer_load_dwordx4 v[{r}:{r+3}], v3, s[8:11], 0 offen offset:{((r-lo)*64) % 4096}")
    s.append("    s_waitcnt vmcnt(0)")
    return "\n".join(s)

def m32(i):
    d = 128 + 16 * (i % 8)
    a = 64 + 4 * (i % 8); b = 96 + 4 * ((i // 8) % 8)
    return f"    v_mfma_f32_32x32x16_bf16 v[{d}:{d+15}], v[{a}:{a+3}], v[{b}:{b+3}], v[{d}:{d+15}]"
def m16(i):
    d = 128 + 4 * (i % 32)
    a = 64 + 4 * (i % 8); b = 96 + 4 * ((i // 8) % 8)
    return f"    v_mfma_f32_16x16x32_bf16 v[{d}:{d+3}], v[{a}:{a+3}], v[{b}:{b+3}], v[{d}:{d+3}]"
pre_r = init() + "\n" + loadregs(64, 128)
pre_z = init()
open("clk_nop.s", "w").write(ts_kernel("clk_nop", "\n".join("    s_nop 15" for _ in range(128)), 40, pre_z))
open("clk_m32r.s", "w").write(ts_kernel("clk_m32r", "\n".join(m32(i) for i in range(64)), 40, pre_r))
open("clk_m16r.s", "w").write(ts_kernel("clk_m16r", "\n".join(m16(i) for i in range(128)), 40, pre_r))
open("clk_m32z.s", "w").write(ts_kernel("clk_m32z", "\n".join(m32(i) for i in range(64)), 40, pre_z))
```

```python
import sys
def kernel(name, body, iters, grid=256, lds=65536, pre="", nv=512, threads=256, reps=3):
    acc = 256 if nv > 256 else nv
    return f"""; @launch grid=({grid},1,1) block=({threads},1,1) lds={lds}
; @show 16
.amdgcn_target "amdgcn-amd-amdhsa--gfx950"
.text
.globl {name}_kernel
.p2align 8
.type {name}_kernel,@function
{name}_kernel:
    s_load_dwordx2 s[4:5], s[0:1], 0
    s_load_dwordx2 s[6:7], s[0:1], 16
    s_waitcnt lgkmcnt(0)
    s_mov_b32 s8, s4
    s_mov_b32 s9, s5
    s_mov_b32 s10, 0x10000000
    s_mov_b32 s11, 0x00020000
    s_mov_b32 s12, s6
    s_mov_b32 s13, s7
    s_mov_b32 s14, 0x10000
    s_mov_b32 s15, 0x00020000
    v_lshrrev_b32 v1, 6, v0
    s_nop 1
    v_readfirstlane_b32 s20, v1
    v_and_b32 v2, 63, v0
    v_lshlrev_b32 v3, 4, v0
    s_lshl_b32 s21, s2, 16
    v_add_u32 v3, s21, v3
    v_lshlrev_b32 v4, 4, v2
    v_lshlrev_b32 v5, 3, v2
    buffer_load_dwordx4 v[8:11], v3, s[8:11], 0 offen
    buffer_load_dwordx4 v[12:15], v3, s[8:11], 0 offen offset:1024
    s_waitcnt vmcnt(0)
{pre}
    s_mov_b32 s22, 0
    s_barrier
    s_memtime s[24:25]
    s_memrealtime s[28:29]
    s_waitcnt lgkmcnt(0)
    .p2align 6
L_loop:
{body}
    s_add_u32 s22, s22, 1
    s_cmp_lt_u32 s22, {iters}
    s_cbranch_scc1 L_loop
    s_waitcnt vmcnt(0) lgkmcnt(0)
    s_memtime s[26:27]
    s_memrealtime s[30:31]
    s_waitcnt lgkmcnt(0)
    s_sub_u32 s26, s26, s24
    s_sub_u32 s30, s30, s28
    s_lshl_b32 s23, s2, {2 if threads==256 else 3}
    s_add_u32 s23, s23, s20
    s_lshl_b32 s23, s23, 3
    v_mov_b32 v6, s23
    v_mov_b32 v16, s26
    v_mov_b32 v17, s30
    buffer_store_dwordx2 v[16:17], v6, s[12:15], 0 offen
    s_endpgm
.section .rodata,"a"
.p2align 6
.amdhsa_kernel {name}_kernel
  .amdhsa_next_free_vgpr {nv}
  .amdhsa_next_free_sgpr 102
  .amdhsa_accum_offset {acc}
  .amdhsa_group_segment_fixed_size 0
  .amdhsa_kernarg_size 32
  .amdhsa_user_sgpr_count 2
  .amdhsa_user_sgpr_kernarg_segment_ptr 1
  .amdhsa_system_sgpr_workgroup_id_x 1
.end_amdhsa_kernel
"""

def mfma(i, nacc=4, base=64):
    d = base + 16 * (i % nacc)
    return f"    v_mfma_f32_32x32x16_bf16 v[{d}:{d+15}], v[8:11], v[12:15], v[{d}:{d+15}]"

def body(n, fill):
    out = []
    for i in range(n):
        out.append(mfma(i))
        out += ["    " + f for f in fill(i)]
    return "\n".join(out)

def init():
    s = []
    for r in range(16, 256):
        s.append(f"    v_mov_b32 v{r}, 0")
    return "\n".join(s)

EXP = lambda i: f"v_exp_f32 v{32+(i%8)}, v{40+(i%8)}"
ADD = lambda i: f"v_add_f32 v{48+(i%4)}, v{32+((i+4)%8)}, v{48+(i%4)}"
CVT = lambda i: f"v_cvt_pk_bf16_f32 v{52+(i%4)}, v{32+((i+3)%8)}, v{32+((i+4)%8)}"
FMA = lambda i: f"v_fma_f32 v{40+((i+4)%8)}, v{56}, v{57}, v{58}"
RD128 = lambda i: f"ds_read_b128 v[{16+4*(i%2)}:{19+4*(i%2)}], v4 offset:{(i%16)*1024}"
RDTR = lambda i: f"ds_read_b64_tr_b16 v[{24+2*(i%4)}:{25+2*(i%4)}], v5 offset:{(i%16)*512}"
def DMA(i):
    return [f"s_mov_b32 m0, {32768 + (i%8)*1024}", "s_nop 0", f"buffer_load_dwordx4 v3, s[8:11], 0 offen lds"]

cases = {
 "a_mfma": lambda i: [],
 "b_softmax": lambda i: [EXP(i), ADD(i)] + ([CVT(i)] if i % 2 else []),
 "c_softmax_fma": lambda i: [EXP(i), ADD(i), FMA(i)] + ([CVT(i)] if i % 2 else []),
 "d_sm_lds": lambda i: [EXP(i), ADD(i)] + ([CVT(i)] if i % 2 else []) + ([RD128(i)] if i % 4 == 0 else []) + ([RDTR(i)] if i % 2 == 0 else []),
 "e_smfma_lds": lambda i: [EXP(i), ADD(i), FMA(i)] + ([CVT(i)] if i % 2 else []) + ([RD128(i)] if i % 4 == 0 else []) + ([RDTR(i)] if i % 2 == 0 else []),
 "f_mfma_dma": lambda i: (DMA(i//8) if i % 8 == 0 else []),
 "g_sm_lds_dma": lambda i: [EXP(i), ADD(i)] + ([CVT(i)] if i % 2 else []) + ([RD128(i)] if i % 4 == 0 else []) + ([RDTR(i)] if i % 2 == 0 else []) + (DMA(i//8) if i % 8 == 3 else []),
 "h_smfma_lds_dma": lambda i: [EXP(i), ADD(i), FMA(i)] + ([CVT(i)] if i % 2 else []) + ([RD128(i)] if i % 4 == 0 else []) + ([RDTR(i)] if i % 2 == 0 else []) + (DMA(i//8) if i % 8 == 3 else []),
}
for k, f in cases.items():
    b = body(64, f)
    if "dma" in k:
        b += "\n    s_waitcnt vmcnt(8)"
    if "lds" in k:
        b += "\n    s_waitcnt lgkmcnt(0)"
    open(f"{k}.s", "w").write(kernel(k, b, 64, pre=init()))
print(" ".join(f"mb/{k}.s" for k in cases))
```

```python
from gen_issue import kernel, init, EXP, ADD, CVT, FMA
from gen_clock import loadregs
import sys
def loadacc():
    s = []
    for r in range(0, 64):
        s.append(f"    v_accvgpr_write_b32 a{r}, v{64+r}")
    for r in range(64, 256):
        s.append(f"    v_accvgpr_write_b32 a{r}, 0")
    return "\n".join(s)
def ldsfill():
    s = ["    v_lshlrev_b32 v7, 4, v0"]
    for i in range(16):
        s.append(f"    ds_write_b128 v7, v[{64+4*i}:{67+4*i}] offset:{i*4096}")
    s.append("    s_waitcnt lgkmcnt(0)")
    return "\n".join(s)
pre = init() + "\n" + loadregs(64, 128) + "\n" + loadacc() + "\n" + ldsfill() + """
    v_and_b32 v40, 0x3fffffff, v64
    v_and_b32 v41, 0x3fffffff, v65
    v_and_b32 v42, 0x3fffffff, v66
    v_and_b32 v43, 0x3fffffff, v67
    v_and_b32 v44, 0x3fffffff, v68
    v_and_b32 v45, 0x3fffffff, v69
    v_and_b32 v46, 0x3fffffff, v70
    v_and_b32 v47, 0x3fffffff, v71
"""
def m32(d, a, b, dp="v", ap="v", bp="v"):
    return f"    v_mfma_f32_32x32x16_bf16 {dp}[{d}:{d+15}], {ap}[{a}:{a+3}], {bp}[{b}:{b+3}], {dp}[{d}:{d+15}]"
def m16(d, a, b, dp="v", ap="v", bp="v"):
    return f"    v_mfma_f32_16x16x32_bf16 {dp}[{d}:{d+3}], {ap}[{a}:{a+3}], {bp}[{b}:{b+3}], {dp}[{d}:{d+3}]"
RD128 = lambda i: f"ds_read_b128 v[{16+4*(i%2)}:{19+4*(i%2)}], v4 offset:{(i%48)*1024}"
RDTR = lambda i: f"ds_read_b64_tr_b16 v[{24+2*(i%4)}:{25+2*(i%4)}], v5 offset:{(i%64)*512}"
C = {}
C["p32_AB"]   = [m32(128+16*(i%8), 64+4*(i%8), 96+4*((i*3+i//8)%8)) for i in range(64)]
C["p32_Afix2"]= [m32(128+16*(i%8), 64+4*((i//2)%8), 96+4*((i*3+i//8)%8)) for i in range(64)]
C["p32_Bfix8"]= [m32(128+16*(i%8), 64+4*(i%8), 96+4*((i//8)%8)) for i in range(64)]
C["p32_Afix8"]= [m32(128+16*(i%8), 64+4*((i//8)%8), 96+4*(i%8)) for i in range(64)]
C["p32_chain"]= [m32(128+16*((i//8)%8), 64+4*(i%8), 96+4*((i*3+i//8)%8)) for i in range(64)]
C["p32_acc"]  = [m32(64+16*(i%8), 64+4*(i%8), 96+4*((i*3+i//8)%8), dp="a") for i in range(64)]
C["p32_accAB"]= [m32(64+16*(i%8), 4*(i%8), 32+4*((i*3+i//8)%8), dp="a", ap="a", bp="a") for i in range(64)]
C["p16_AB"]   = [m16(128+4*(i%32), 64+4*(i%8), 96+4*((i*3+i//8)%8)) for i in range(128)]
C["p16_Bfix4"]= [m16(128+4*(i%32), 64+4*(i%8), 96+4*((i//4)%8)) for i in range(128)]
C["p16_Afix4"]= [m16(128+4*(i%32), 64+4*((i//4)%8), 96+4*(i%8)) for i in range(128)]
C["p16_chain"]= [m16(128+4*((i//4)%32), 64+4*(i%8), 96+4*((i*3+i//8)%8)) for i in range(128)]
def withfill(base, fill):
    o = []
    for i, m in enumerate(base):
        o.append(m); o += ["    " + f for f in fill(i)]
    return o
C["p32_duty80"] = withfill(C["p32_AB"], lambda i: ["s_nop 7"])
C["p32_duty67"] = withfill(C["p32_AB"], lambda i: ["s_nop 9"])
C["p32_sm"] = withfill(C["p32_AB"], lambda i: [EXP(i), ADD(i)] + ([CVT(i)] if i % 2 else []))
C["p32_smf"] = withfill(C["p32_AB"], lambda i: [EXP(i), ADD(i), FMA(i)] + ([CVT(i)] if i % 2 else []))
C["p32_lds"] = withfill(C["p32_AB"], lambda i: ([RD128(i)] if i % 4 == 0 else []) + ([RDTR(i)] if i % 2 == 0 else []))
C["p32_lds2"] = withfill(C["p32_AB"], lambda i: ([RD128(i)] if i % 2 == 0 else []) + [RDTR(i)])
C["p32_smlds"] = withfill(C["p32_AB"], lambda i: [EXP(i), ADD(i)] + ([CVT(i)] if i % 2 else []) + ([RD128(i)] if i % 4 == 0 else []) + ([RDTR(i)] if i % 2 == 0 else []))
C["p16_sm"] = withfill(C["p16_AB"], lambda i: ([EXP(i//2)] if i%2==0 else [ADD(i//2)]) + ([CVT(i//2)] if i % 4 == 1 else []))
C["p16_smlds"] = withfill(C["p16_AB"], lambda i: ([EXP(i//2)] if i%2==0 else [ADD(i//2)]) + ([CVT(i//2)] if i % 4 == 1 else []) + ([RD128(i//2)] if i % 8 == 3 else []) + ([RDTR(i//2)] if i % 8 == 7 else [])+ ([RDTR(i//2)] if i % 8 == 3 else []))
for k, b in C.items():
    open(f"{k}.s", "w").write(kernel(k, "\n".join(b), 16, pre=pre, reps=9).replace("@show 16", "@show 4"))
print(" ".join(f"mb/{k}.s" for k in C))
print(", ".join(f'"mb/{k}.s"' for k in C))
```

```python
from gen_issue import kernel, init
from gen_pow import m16
def mk(nm, op, addr, every=2, skew=False, fill=1):
    pre = init() + "\n" + addr + "\n"
    if skew: pre += "    s_and_b32 s35, s20, %d\n    s_cmp_eq_u32 s35, 0\n    s_cbranch_scc1 L_ns\n    s_nop 4\nL_ns:\n" % skew
    b = []
    for i in range(128):
        b.append(m16(128+4*((i//4)%32), 64+4*(i%8), 96+4*((i*3+i//8)%8)))
        if op and i % every == 0:
            b.append("    " + op.replace("@", str(32 * ((i // every) % 8))))
            b += ["    v_add_f32 v40, v41, v40"] * fill
        else:
            b += ["    v_add_f32 v40, v41, v40", "    v_add_f32 v42, v41, v42"]
    k = kernel(nm, "\n".join(b), 8, pre=pre, reps=2, grid=8).replace("@show 16", "@show 2").replace("    s_barrier\n", "")
    k = k.replace(pre, "    s_barrier\n" + pre)
    open(nm + ".s", "w").write(k)
    return "mb/" + nm + ".s"
conf = "    v_and_b32 v7, 15, v2\n    v_mul_u32_u24 v7, 272, v7\n    v_lshrrev_b32 v9, 4, v2\n    v_lshl_add_u32 v7, v9, 3, v7\n    v_lshl_add_u32 v7, v1, 13, v7"
lin = "    v_lshlrev_b32 v7, 3, v2\n    v_lshl_add_u32 v7, v1, 13, v7"
lin16 = "    v_lshlrev_b32 v7, 4, v2\n    v_lshl_add_u32 v7, v1, 13, v7"
n = [mk("dw_none", "", lin), mk("dw_conf", "ds_write_b64 v7, v[44:45] offset:@", conf), mk("dw_lin", "ds_write_b64 v7, v[44:45] offset:@", lin),
     mk("dw_conf3", "ds_write_b64 v7, v[44:45] offset:@", conf, 3), mk("dw_conf4", "ds_write_b64 v7, v[44:45] offset:@", conf, 4),
     mk("dw_conf_sk1", "ds_write_b64 v7, v[44:45] offset:@", conf, 2, 1), mk("dw_conf_sk2", "ds_write_b64 v7, v[44:45] offset:@", conf, 2, 2),
     mk("dw_w2", "ds_write2_b64 v7, v[44:45], v[46:47] offset0:0 offset1:4", conf, 4), mk("dw_b32", "ds_write_b32 v7, v44 offset:@", conf, 1),
     mk("dw_conf_f0", "ds_write_b64 v7, v[44:45] offset:@", conf, 2, fill=0), mk("dw_conf4_f0", "ds_write_b64 v7, v[44:45] offset:@", conf, 4, fill=0), mk("dw_128_4", "ds_write_b128 v7, v[44:47] offset:@", lin16, 4, fill=0)]
print(" ".join(n))
```
